```python
import torch

def _softmax(x, axis=-1):
    return torch.softmax(x, dim=axis)
def _gelu(x):
    return torch.nn.functional.gelu(x, approximate="tanh")
def _silu(x):
    return torch.nn.functional.silu(x)
def _sigmoid(x):
    return torch.sigmoid(x)
def _layernorm(x, axis=-1, eps=1e-5):
    m = x.mean(dim=axis, keepdim=True)
    v = x.var(dim=axis, keepdim=True, unbiased=False)
    return (x - m) / torch.sqrt(v + eps)
def _scatter_add(tgt, idx, src, axis=0):
    return tgt.clone().index_add_(axis, idx, src)
def _segment_sum(src, seg, n):
    out = torch.zeros((n,) + src.shape[1:], dtype=src.dtype)
    return out.index_add_(0, seg, src)
def _pad(x, pw):
    flat = tuple(v for pair in reversed(pw) for v in pair)
    return torch.nn.functional.pad(x, flat)

kernel_name = 'gated_mix__gqa_block_cached__swiglu_ffn__decode'

def setup_inputs():

    _w = (lambda a: (lambda t: t.to(torch.bfloat16) if t.is_floating_point() else t)(torch.as_tensor(a)))
    def _A_setup():
        B, Sq, D = 2, 1, 512
        Hq, Hkv, Sk, Dh = 32, 8, 8192, 128
        assert Hq % Hkv == 0, (Hq, Hkv)
        return {
            "x": _w((lambda *s: torch.randn(*s, dtype=torch.bfloat16) * 0.05)(B, Sq, D)),
            "k_cache": _w((lambda *s: torch.randn(*s, dtype=torch.bfloat16) * 6.4)(B, Hkv, Sk, Dh)),
            "v_cache": _w((lambda *s: torch.randn(*s, dtype=torch.bfloat16) * 0.2)(B, Hkv, Sk, Dh)),
            "wq": _w((lambda *s: torch.randn(*s, dtype=torch.bfloat16) * 6.4)(D, Hq * Dh) * (D ** -0.5)),
            "wo": _w((lambda *s: torch.randn(*s, dtype=torch.bfloat16) * 0.2)(Hq * Dh, D) * ((Hq * Dh) ** -0.5)),
        }
    _A_in = _A_setup()

    def _B_setup():
        B, S, D, F = 2, 1, 512, 1792
        return {
            "x": _w((lambda *s: torch.randn(*s, dtype=torch.bfloat16) * 0.05)(B, S, D)),
            "w_gate": _w((lambda *s: torch.randn(*s, dtype=torch.bfloat16) * 0.05)(D, F)),
            "w_up": _w((lambda *s: torch.randn(*s, dtype=torch.bfloat16) * 0.05)(D, F)),
            "w_down": _w((lambda *s: torch.randn(*s, dtype=torch.bfloat16) * 0.05)(F, D)),
        }
    _B_in = _B_setup()

    return {
        "A_x": _A_in["x"],
        "A_k_cache": _A_in["k_cache"],
        "A_v_cache": _A_in["v_cache"],
        "A_wq": _A_in["wq"],
        "A_wo": _A_in["wo"],
        "B_x": _B_in["x"],
        "B_w_gate": _B_in["w_gate"],
        "B_w_up": _B_in["w_up"],
        "B_w_down": _B_in["w_down"],
        "gate_w": _w((lambda *s: torch.randn(*s, dtype=torch.bfloat16) * 0.05)(512) * 16.0),
    }

def reference(A_x, A_k_cache, A_v_cache, A_wq, A_wo, B_x, B_w_gate, B_w_up, B_w_down, gate_w):
    def _A_ref(x, k_cache, v_cache, wq, wo):
        B, Sq, D = x.shape
        Hq, Dh = 32, 128
        Hkv = k_cache.shape[1]
        rep = Hq // Hkv
        q = (lambda x, *d: x.permute(*d))((x @ wq).reshape(B, Sq, Hq, Dh), 0, 2, 1, 3)
        k = (lambda x, n, axis: torch.repeat_interleave(x, n, dim=axis))(k_cache, rep, axis=1)
        v = (lambda x, n, axis: torch.repeat_interleave(x, n, dim=axis))(v_cache, rep, axis=1)
        scores = torch.einsum("bhqd,bhkd->bhqk", q, k) * (Dh ** -0.5)
        p = _softmax(scores, axis=-1)
        o = torch.einsum("bhqk,bhkd->bhqd", p, v)
        return (lambda x, *d: x.permute(*d))(o, 0, 2, 1, 3).reshape(B, Sq, Hq * Dh) @ wo

    def _B_ref(x, w_gate, w_up, w_down):
        g = _silu(x @ w_gate)
        u = x @ w_up
        return (g * u) @ w_down

    x = A_x
    g = _sigmoid((x * gate_w).sum(-1, keepdims=True))
    a = _A_ref(x, A_k_cache, A_v_cache, A_wq, A_wo)
    b = _B_ref(x, B_w_gate, B_w_up, B_w_down)
    return g * a + (1 - g) * b
```

```python
import re

TRANS = ("v_exp_f32", "v_log_f32", "v_rcp_f32", "v_rsq_f32", "v_sqrt_f32", "v_sin_f32", "v_cos_f32", "v_rcp_iflag_f32")

def regs_of(tok):
    tok = tok.strip()
    neg = tok.startswith("-")
    if neg: tok = tok[1:]
    if tok.startswith("abs(") and tok.endswith(")"): tok = tok[4:-1]
    if tok.startswith("|") and tok.endswith("|"): tok = tok[1:-1]
    m = re.fullmatch(r"([vsa])(\d+)", tok)
    if m: return {(m.group(1), int(m.group(2)))}
    m = re.fullmatch(r"([vsa])\[(\d+):(\d+)\]", tok)
    if m: return {(m.group(1), i) for i in range(int(m.group(2)), int(m.group(3)) + 1)}
    if tok == "vcc": return {("s", "vcc_lo"), ("s", "vcc_hi")}
    if tok in ("vcc_lo", "vcc_hi"): return {("s", tok)}
    if tok == "exec": return {("s", "exec_lo"), ("s", "exec_hi")}
    if tok in ("exec_lo", "exec_hi"): return {("s", tok)}
    if tok == "m0": return {("s", "m0")}
    return set()

def split_ops(s):
    out = []; depth = 0; cur = ""
    for ch in s:
        if ch in "[(": depth += 1
        if ch in "])": depth -= 1
        if ch == "," and depth == 0:
            out.append(cur.strip()); cur = ""
        else: cur += ch
    if cur.strip(): out.append(cur.strip())
    return out

class Ins:
    def __init__(self, text):
        self.text = text
        t = text.split(";")[0].strip()
        parts = t.split(None, 1)
        self.op = parts[0]
        rest = parts[1] if len(parts) > 1 else ""
        ops = split_ops(rest)
        self.mods = ""
        if ops:
            last = ops[-1].split(None, 1)
            if len(last) > 1 and not ops[-1].startswith("hwreg") :
                ops[-1] = last[0]; self.mods = last[1]
        self.ops = ops
        op = self.op
        self.kind = ("mfma" if op.startswith("v_mfma") else "valu" if op.startswith("v_") else
                     "ds" if op.startswith("ds_") else
                     "vmem" if op.startswith(("buffer_", "global_")) else "salu")
        self.dpp = ("_dpp" in op) or ("row_" in self.mods) or ("quad_perm" in self.mods)
        self.trans = op.replace("_e32", "").replace("_e64", "") in TRANS
        R = [regs_of(o) for o in ops]
        self.w = set(); self.r = set()
        if self.kind == "mfma":
            self.w = R[0]; self.a = R[1] | R[2]; self.c = R[3]; self.r = self.a | self.c
            self.passes = 8 if "32x32x16" in op or "32x32x8" in op else 4
        elif self.kind == "valu":
            if op.startswith("v_permlane") and "swap" in op:
                self.w = R[0] | R[1]; self.r = R[0] | R[1]
            elif op.startswith("v_cmp"):
                self.w = R[0]; self.r = set().union(*R[1:])
            elif op.startswith(("v_add_co", "v_sub_co", "v_addc_co", "v_subb_co")):
                self.w = R[0] | R[1]; self.r = set().union(*R[2:])
            elif op.startswith(("v_readlane", "v_readfirstlane")):
                self.w = R[0]; self.r = set().union(*R[1:])
            else:
                self.w = R[0]; self.r = set().union(*R[1:]) if len(R) > 1 else set()
                if op.startswith(("v_fmac", "v_dot2c", "v_pk_fmac")) or self.dpp or op.startswith("v_writelane"):
                    self.r |= R[0]
                if op.startswith("v_cndmask") and len(ops) == 3:
                    self.r |= regs_of("vcc")
        elif self.kind == "ds":
            if op.startswith(("ds_read", "ds_bpermute", "ds_permute", "ds_swizzle")):
                self.w = R[0]; self.r = set().union(*R[1:])
            else:
                self.r = set().union(*R)
        elif self.kind == "vmem":
            lds = re.search(r"\blds\b", self.mods) is not None
            self.lds = lds
            if "load" in op and not lds:
                self.w = R[0]; self.r = set().union(*R[1:])
            else:
                self.r = set().union(*R)
            self.wide_store = ("store" in op) and ("x3" in op or "x4" in op)
            self.store_data = R[0] if op.startswith("buffer_store") else (R[1] if op.startswith("global_store") and len(R) > 1 else set())
        else:
            if op.startswith(("s_cmp", "s_cbranch", "s_branch", "s_waitcnt", "s_nop", "s_barrier", "s_endpgm", "s_sleep", "s_setprio", "s_bitcmp")):
                self.r = set().union(*R) if R else set()
            elif op.startswith(("s_load", "s_memrealtime", "s_memtime")):
                self.w = R[0]; self.r = set().union(*R[1:]) if len(R) > 1 else set()
            else:
                self.w = R[0] if R else set(); self.r = set().union(*R[1:]) if len(R) > 1 else set()
                if "saveexec" in op: self.w |= regs_of("exec"); self.r |= regs_of("exec")
                if op.startswith(("s_addk", "s_mulk")): self.r |= R[0]

def only(regs, k): return {r for r in regs if r[0] == k}

class Ev:
    __slots__ = ("pos", "ins")
    def __init__(self, pos, ins): self.pos = pos; self.ins = ins

def need(prod, cons):
    n = 0
    pw_v = only(prod.w, "v") | only(prod.w, "a"); pw_s = only(prod.w, "s")
    if prod.kind == "valu":
        if cons.kind == "mfma" and pw_v & cons.r: n = max(n, 2)
        if cons.kind == "valu":
            if cons.dpp and pw_v & cons.r: n = max(n, 2)
            if cons.op.startswith("v_permlane") and pw_v & cons.r: n = max(n, 2)
            if cons.op.startswith(("v_readlane", "v_readfirstlane")) and pw_v & cons.r: n = max(n, 1)
            if prod.trans and not cons.trans and pw_v & cons.r: n = max(n, 1)
            if pw_s & cons.r:
                n = max(n, 2)
                if cons.op.startswith(("v_readlane", "v_writelane")): n = max(n, 4)
            if ("op_sel" in prod.mods or "sdwa" in prod.op or "dst_sel" in prod.mods) and pw_v & (cons.r | cons.w): n = max(n, 1)
        if cons.kind == "mfma" and pw_s & cons.r: n = max(n, 2)
        if cons.kind == "vmem" and pw_s & cons.r: n = max(n, 5)
        if cons.kind in ("salu",) and pw_s & cons.r and not cons.op.startswith("s_cbranch"): n = max(n, 1)
        if ("s", "exec_lo") in pw_s or ("s", "exec_hi") in pw_s:
            n = max(n, 5 if (cons.kind == "valu" and cons.dpp) else 4)
    if prod.kind == "mfma":
        p = prod.passes
        big = {4: 8, 8: 12}[p]; part = {4: 6, 8: 10}[p]; war = {4: 3, 8: 7}[p]
        if cons.kind == "mfma":
            if prod.w & cons.a: n = max(n, big)
            if prod.w & cons.c:
                if not (prod.w == cons.c and prod.passes == cons.passes): n = max(n, part)
            if prod.w & cons.w and not (prod.w == cons.w): n = max(n, part)
        elif cons.kind in ("valu",):
            if prod.w & (cons.r | cons.w): n = max(n, big)
            if prod.c & cons.w: n = max(n, war)
        elif cons.kind in ("ds", "vmem"):
            if prod.w & (cons.r | cons.w): n = max(n, big)
            if prod.c & cons.w: n = max(n, war)
    if prod.kind == "salu" and ("s", "m0") in prod.w:
        if cons.kind == "vmem" and getattr(cons, "lds", False): n = max(n, 1)
    if prod.kind == "vmem" and getattr(prod, "wide_store", False):
        if prod.store_data & cons.w:
            n = max(n, 2 if cons.kind in ("valu", "mfma") else 1)
    return n

class Asm:
    def __init__(self):
        self.out = []; self.pos = 0; self.events = []; self.snap = {}; self.seen_labels = set(); self.nnops = 0
    def raw(self, text): self.out.append(text)
    def comment(self, t): self.out.append("    ; " + t)
    def label(self, name):
        for (evs, bpos) in self.snap.get(name, []):
            for e, epos in evs:
                elapsed = bpos - epos
                newpos = self.pos - elapsed
                if e in self.events:
                    if newpos > e.pos: e.pos = newpos
                else:
                    e.pos = newpos; self.events.append(e)
        self.seen_labels.add(name)
        self.out.append(name + ":")
    def nop(self, n):
        while n > 0:
            k = min(n, 16)
            self.out.append(f"    s_nop {k-1}"); self.pos += k; n -= k; self.nnops += 1
    def __call__(self, text):
        for line in text.split("\n"):
            line = line.strip()
            if not line: continue
            if line.startswith(";"): self.out.append("    " + line); continue
            if line.endswith(":"): self.label(line[:-1]); continue
            if line.startswith("."): self.out.append(line); continue
            self.ins(line)
    def ins(self, line):
        I = Ins(line)
        if I.op == "s_nop":
            n = int(I.ops[0]) + 1
            self.out.append("    " + line); self.pos += n; return
        req = 0
        for e in self.events:
            n = need(e.ins, I)
            if n:
                have = self.pos - e.pos - 1
                req = max(req, n - have)
        if req > 0: self.nop(req)
        self.out.append("    " + line)
        self.events = [e for e in self.events if self.pos - e.pos < 24]
        self.events.append(Ev(self.pos, I))
        self.pos += 1
        if I.op.startswith(("s_cbranch", "s_branch")):
            tgt = I.ops[0]
            if tgt in self.seen_labels:
                pass
            else:
                self.snap.setdefault(tgt, []).append(([(e, e.pos) for e in self.events], self.pos))
            if I.op == "s_branch":
                self.events = []
        if I.op == "s_endpgm": self.events = []
    def text(self): return "\n".join(self.out) + "\n"

class VM:
    def __init__(self, asm): self.a = asm; self.q = []
    def issue(self, tag): self.q.append(tag)
    def wait(self, tag):
        idx = [i for i, t in enumerate(self.q) if t == tag]
        if not idx: return
        last = idx[-1]
        n = len(self.q) - 1 - last
        assert n <= 63, n
        self.a(f"s_waitcnt vmcnt({n})")
        self.q = self.q[last + 1:]
    def wait_all(self):
        self.a("s_waitcnt vmcnt(0)"); self.q = []
    def outstanding(self): return len(self.q)

class Regs:
    def __init__(self, start, limit): self.n = start; self.limit = limit; self.names = {}
    def __call__(self, name, cnt=1, align=1):
        if cnt >= 2: align = max(align, 2)
        self.n = (self.n + align - 1) // align * align
        base = self.n; self.n += cnt
        assert self.n <= self.limit, f"out of registers at {name}"
        self.names[name] = (base, cnt)
        return base
def vr(b, n=1): return f"v{b}" if n == 1 else f"v[{b}:{b+n-1}]"
def sr(b, n=1): return f"s{b}" if n == 1 else f"s[{b}:{b+n-1}]"
```

```python
import sys, math
from asmb import *

KNAME = "gated_mix__gqa_block_cached__swiglu_ffn__decode_kernel"

WS_EPOCH = 0
WS_QP = 0x1000
WS_FP = WS_QP + 65536
WS_AP = 0x20000
WS_ML = WS_AP + 0x80000
WS_OP = WS_ML + 0x4000
WS_STAMP = WS_OP + 0x80000
WS_SIZE = WS_STAMP + 0x40000

WREG = 36864
SPARE = 32768
MISC = 4 * WREG
L_WD = MISC
L_P0 = MISC + 0x2000
L_Q = L_P0 + 0x800
L_MX = L_Q + 0x400
L_H = L_MX + 0x100
L_ZERO = L_H + 0x40
L_O2 = L_ZERO + 0x40
L_G = L_O2 + 0x80
L_FIN = L_G + 0x100
LDS_BYTES = 163840
assert L_FIN + 256 <= LDS_BYTES

TAGMASK = 0x3FF
LOG2E = 1.4426950408889634
SCALE = 128 ** -0.5

def f2u(x):
    import struct
    return struct.unpack("<I", struct.pack("<f", x))[0]

class Cfg:
    kvpol = "nt"
    wpol = "nt"
    WK = 3
    WV = 99
    p2pos = "end"
    stamps = False
    mimic = False
    spin = 1 << 17
    sleep = 0
    def __init__(self, **kw):
        for k, v in kw.items():
            assert hasattr(self, k), k
            setattr(self, k, v)

def gen(cfg):
    a = Asm()
    S = Regs(30, 100)
    P_X, P_K, P_V, P_WQ, P_WO, P_WG, P_WU, P_WD, P_GW, P_OUT, P_DBG, P_WS = 4, 6, 8, 10, 12, 16, 18, 20, 22, 24, 26, 28
    sWave = 3
    sEp = S("ep"); sEn = S("en"); sEnn = S("enn"); sMask = S("mask")
    sHkv = S("hkv"); sIdx = S("idx"); sLds = S("lds"); sSo = S("so")
    sCg = S("cg"); sKh = S("kh"); sMat = S("mat"); sStride = S("stride")
    sT0 = S("t0"); sT1 = S("t1"); sT2 = S("t2"); sT3 = S("t3")
    sSpin = S("spin"); sPidx = S("pidx"); sR = S("r"); sC = S("c"); sW0 = S("w0"); sMp = S("mp")
    rK = S("rK", 4, 4); rV = S("rV", 4, 4); rT = S("rT", 4, 4); rWO = S("rWO", 4, 4); rWD = S("rWD", 4, 4)
    rWS = S("rWS", 4, 4); rX = S("rX", 4, 4); rO = S("rO", 4, 4)
    sSt0 = S("stamp0", 2, 2) if cfg.stamps else None
    sTl = S("stampl", 2, 2) if cfg.stamps else None
    def streg(i): return sSt0 if i == 0 else 4 + 2 * (i - 1)
    nsgpr = S.n
    def srd(r): return f"s[{r}:{r+3}]"
    nstamp = [0]; names = []
    def stamp(name):
        if not cfg.stamps: return
        i = nstamp[0]; assert i < 11
        a(f"s_memrealtime s[{streg(i)}:{streg(i)+1}]"); nstamp[0] += 1
        names.append(name)
    def mksrd(r, plo, off_s, nrec):
        if off_s is None:
            a(f"s_mov_b32 s{r}, s{plo}\ns_mov_b32 s{r+1}, s{plo+1}")
        else:
            a(f"s_add_u32 s{r}, s{plo}, {off_s}\ns_addc_u32 s{r+1}, s{plo+1}, 0")
        a(f"s_mov_b32 s{r+2}, {nrec}\ns_mov_b32 s{r+3}, 0x20000")

    a.raw(f".globl {KNAME}\n.p2align 8\n.type {KNAME},@function\n{KNAME}:")
    a("s_cmp_ge_u32 s2, 256")
    a("s_cbranch_scc1 L_end")
    if cfg.stamps: stamp("start")
    a("s_load_dwordx16 s[4:19], s[0:1], 0")
    a("s_load_dwordx8 s[20:27], s[0:1], 64")
    a("s_load_dwordx2 s[28:29], s[0:1], 96")
    V = Regs(1, 256)
    vLane = V("lane"); vN = V("n"); vG = V("g"); vT = V("t"); vU = V("u"); vW = V("w"); vTag = V("tag")
    a(f"""
    v_lshrrev_b32 v{vT}, 6, v0
    v_and_b32 v{vLane}, 63, v0
    v_readfirstlane_b32 s{sWave}, v{vT}
    v_and_b32 v{vN}, 15, v{vLane}
    v_lshrrev_b32 v{vG}, 4, v{vLane}
    s_and_b32 s{sHkv}, s2, 7
    s_lshr_b32 s{sIdx}, s2, 3
    s_mov_b32 s{sMask}, {TAGMASK}
    s_sub_u32 s{sT0}, s2, 128
    s_cmp_ge_u32 s{sT0}, 56
    s_cselect_b32 s{sMat}, 1, 0
    s_mul_i32 s{sT1}, s{sMat}, 56
    s_sub_u32 s{sT0}, s{sT0}, s{sT1}
    s_cmp_ge_u32 s{sT0}, 28
    s_cselect_b32 s{sKh}, 1, 0
    s_mul_i32 s{sT1}, s{sKh}, 28
    s_sub_u32 s{sCg}, s{sT0}, s{sT1}
    s_and_b32 s{sT0}, s2, 63
    s_lshr_b32 s{sT1}, s2, 6
    s_mov_b32 s{sStride}, 3584
    s_cmp_lt_u32 s2, 128
    s_cselect_b32 s{sCg}, s{sT0}, s{sCg}
    s_cselect_b32 s{sKh}, s{sT1}, s{sKh}
    s_cselect_b32 s{sStride}, 8192, s{sStride}
    s_cselect_b32 s{sMat}, 0, s{sMat}
    s_lshr_b32 s{sT0}, s{sIdx}, 4            ; b
    s_lshl_b32 s{sT1}, s{sHkv}, 1
    s_add_u32 s{sT1}, s{sT1}, s{sT0}         ; hkv*2+b
    s_lshl_b32 s{sT1}, s{sT1}, 4
    s_and_b32 s{sT2}, s{sIdx}, 15            ; split
    s_add_u32 s{sPidx}, s{sT1}, s{sT2}
    s_lshr_b32 s{sT0}, s{sIdx}, 1            ; rr
    s_lshl_b32 s{sR}, s{sHkv}, 4
    s_add_u32 s{sR}, s{sR}, s{sT0}
    s_and_b32 s{sC}, s{sIdx}, 1
    s_mul_i32 s{sW0}, s{sR}, 14
    s_and_b32 s{sW0}, s{sW0}, -4
    s_mul_i32 s{sLds}, s{sWave}, {WREG}
    s_waitcnt lgkmcnt(0)
    s_load_dword s{sEp}, s[{P_WS}:{P_WS+1}], {WS_EPOCH}
    """)
    mksrd(rWS, P_WS, None, WS_SIZE)
    mksrd(rX, P_X, None, 2048)
    a(f"s_cmp_eq_u32 s{sWave}, 4")
    a("s_cbranch_scc1 L_helper")

    vm = VM(a)
    vToff = V("Toff", 2); vKoff = V("Koff", 4); vVoff = V("Voff", 2); vWOoff = V("WOoff", 2); vWDoff = V("WDoff")
    vKrd = V("Krd", 4); vVrd = V("Vrd", 8); vTrd = V("Trd", 4); vWrd = V("Wrd", 4)
    vX = V("X", 8, 4)
    vF = V("F", 32, 4)
    vS = V("S", 32, 4)
    vP = V("P", 16, 4)
    vQ = V("Q", 16, 4)
    vOa = V("Oa", 32, 4)
    vL = V("L", 4, 4); vOnes = V("ones", 4, 4)
    vA2 = V("A2", 16, 4); vAd = V("Ad", 8, 4); vAcc = V("Acc", 4, 4)
    vM = V("M"); vNM = V("NM")
    vA = V("addrA"); vB = V("addrB"); vC = V("addrC"); vD = V("addrD")
    a(f"""
    s_cmp_eq_u32 s{sMat}, 1
    s_cselect_b32 s{sT0}, s{P_WU}, s{P_WG}
    s_cselect_b32 s{sT1}, s{P_WU+1}, s{P_WG+1}
    s_cmp_lt_u32 s2, 128
    s_cselect_b32 s{sT0}, s{P_WQ}, s{sT0}
    s_cselect_b32 s{sT1}, s{P_WQ+1}, s{sT1}
    s_mul_i32 s{sT2}, s{sKh}, s{sStride}
    s_lshl_b32 s{sT2}, s{sT2}, 8
    s_lshl_b32 s{sT3}, s{sCg}, 7
    s_add_u32 s{sT2}, s{sT2}, s{sT3}
    s_add_u32 s{rT}, s{sT0}, s{sT2}
    s_addc_u32 s{rT+1}, s{sT1}, 0
    s_mul_i32 s{rT+2}, s{sStride}, 255
    s_add_u32 s{rT+2}, s{rT+2}, 128
    s_mov_b32 s{rT+3}, 0x20000
    v_and_b32 v{vT}, 1, v{vN}
    v_lshlrev_b32 v{vT}, 10, v{vT}
    v_lshl_add_u32 v{vT}, v{vG}, 4, v{vT}
    s_lshl_b32 s{sT0}, s{sKh}, 9
    s_lshl_b32 s{sT1}, s{sWave}, 7
    s_add_u32 s{sT0}, s{sT0}, s{sT1}
    v_add_u32 v{vA}, s{sT0}, v{vT}
    v_lshrrev_b32 v{vT}, 3, v{vLane}
    v_and_b32 v{vU}, 7, v{vLane}
    v_and_b32 v{vW}, 2, v{vT}
    v_xor_b32 v{vU}, v{vU}, v{vW}
    v_lshlrev_b32 v{vU}, 4, v{vU}
    s_lshl_b32 s{sT0}, s{sWave}, 6
    v_add_u32 v{vW}, s{sT0}, v{vT}
    v_mul_lo_u32 v{vW}, v{vW}, s{sStride}
    v_add_u32 v{vToff}, v{vW}, v{vU}
    v_xor_b32 v{vToff+1}, 64, v{vToff}
    s_lshl_b32 s{sT0}, s{sWave}, 7
    v_lshl_add_u32 v{vW}, v{vT}, 10, v{vU}
    v_add_u32 v{vWOoff}, s{sT0}, v{vW}
    v_xor_b32 v{vWOoff+1}, 64, v{vWOoff}
    v_and_b32 v{vU}, 7, v{vLane}
    v_and_b32 v{vW}, 6, v{vT}
    v_xor_b32 v{vU}, v{vU}, v{vW}
    v_lshlrev_b32 v{vU}, 4, v{vU}
    v_lshl_add_u32 v{vW}, v{vT}, 10, v{vU}
    v_add_u32 v{vWDoff}, s{sT0}, v{vW}
    """)
    def dma(voff, srdr, soff, ldsoff, pol, tag):
        if isinstance(ldsoff, tuple):
            a(f"s_add_u32 m0, {ldsoff[1]}, {ldsoff[2]}")
        else:
            a(f"s_add_u32 m0, s{sLds}, {ldsoff}")
        if isinstance(soff, int):
            if soff == 0: so = "0"
            else:
                a(f"s_mov_b32 s{sSo}, {soff}"); so = f"s{sSo}"
        else: so = soff
        a(f"buffer_load_dwordx4 v{voff}, {srd(srdr)}, {so} offen {pol} lds")
        vm.issue(tag)
    hasT = "L_noT1"
    a("s_cmp_ge_u32 s2, 240")
    a(f"s_cbranch_scc1 {hasT}")
    a(f"buffer_load_dwordx4 v[{vX}:{vX+3}], v{vA}, {srd(rX)}, 0 offen"); vm.issue("X")
    a(f"buffer_load_dwordx4 v[{vX+4}:{vX+7}], v{vA}, {srd(rX)}, 0 offen offset:64"); vm.issue("X")
    a(f"s_lshl_b32 s{sT0}, s{sStride}, 3")
    a(f"s_mov_b32 s{sT1}, 0")
    for i in range(8):
        dma(vToff + (i & 1), rT, f"s{sT1}", 6 * 4096 + i * 1024, cfg.wpol, "T")
        if i < 7: a(f"s_add_u32 s{sT1}, s{sT1}, s{sT0}")
    a(f"{hasT}:")
    a(f"""
    s_lshr_b32 s{sT0}, s{sIdx}, 4
    s_lshl_b32 s{sT0}, s{sT0}, 3
    s_add_u32 s{sT0}, s{sT0}, s{sHkv}        ; b*8+hkv
    s_lshl_b32 s{sT0}, s{sT0}, 21
    s_and_b32 s{sT1}, s{sIdx}, 15
    s_lshl_b32 s{sT1}, s{sT1}, 17
    s_add_u32 s{sT0}, s{sT0}, s{sT1}
    """)
    mksrd(rK, P_K, f"s{sT0}", 131072)
    mksrd(rV, P_V, f"s{sT0}", 131072)
    a(f"""
    s_lshl_b32 s{sT0}, s{sWave}, 10
    v_lshlrev_b32 v{vT}, 8, v{vG}
    v_add_u32 v{vT}, s{sT0}, v{vT}           ; wv*1024 + k4*256
    v_xor_b32 v{vU}, v{vN}, v{vG}
    v_lshl_add_u32 v{vKoff}, v{vU}, 4, v{vT}
    v_xor_b32 v{vKoff+1}, 64, v{vKoff}
    v_xor_b32 v{vKoff+2}, 128, v{vKoff}
    v_xor_b32 v{vKoff+3}, 192, v{vKoff}
    v_lshlrev_b32 v{vU}, 1, v{vG}
    v_xor_b32 v{vU}, v{vN}, v{vU}
    v_lshl_add_u32 v{vVoff}, v{vU}, 4, v{vT}
    v_xor_b32 v{vVoff+1}, 128, v{vVoff}
    """)
    def slotV(j): return SPARE if j == 0 else (j - 1) * 4096
    def issueK(u):
        for i in range(4):
            dma(vKoff + i, rK, (16 * u + 4 * i) * 1024, u * 4096 + i * 1024, cfg.kvpol, f"K{u}")
    def issueV(j):
        for i in range(4):
            dma(vVoff + (i & 1), rV, (16 * j + 4 * i) * 1024, slotV(j) + i * 1024, cfg.kvpol, f"V{j}")
    def issueP2():
        for i in range(4):
            dma(vWOoff + (i & 1), rWO, 8192 * i, 7 * 4096 + i * 1024, cfg.wpol, "WO")
        for i in range(2):
            a(f"s_lshl_b32 s{sT0}, s{sWave}, 11")
            a(f"s_add_u32 s{sT0}, s{sT0}, {L_WD + 1024 * i}")
            dma(vWDoff, rWD, 8192 * i, ("abs", f"s{sT0}", 0), cfg.wpol, "WD")
    WK = cfg.WK
    nk = 0
    first = max(1, WK - 2)
    for u in range(first): issueK(u); nk += 1
    a(f"""
    v_xor_b32 v{vU}, v{vG}, v{vN}
    v_lshlrev_b32 v{vU}, 4, v{vU}
    v_lshl_add_u32 v{vU}, v{vN}, 8, v{vU}
    v_add_u32 v{vKrd}, s{sLds}, v{vU}
    v_xor_b32 v{vKrd+1}, 64, v{vKrd}
    v_xor_b32 v{vKrd+2}, 128, v{vKrd}
    v_xor_b32 v{vKrd+3}, 192, v{vKrd}
    v_lshrrev_b32 v{vT}, 2, v{vLane}         ; rho = l>>2
    v_and_b32 v{vU}, 7, v{vT}
    v_lshlrev_b32 v{vU}, 5, v{vU}
    v_lshl_add_u32 v{vU}, v{vT}, 8, v{vU}
    v_and_b32 v{vW}, 3, v{vLane}             ; c4
    v_lshl_add_u32 v{vU}, v{vW}, 3, v{vU}
    v_add_u32 v{vVrd}, s{sLds}, v{vU}
    """)
    for dt in range(1, 8): a(f"v_xor_b32 v{vVrd+dt}, {dt << 5}, v{vVrd}")
    a(f"""
    v_and_b32 v{vU}, 3, v{vT}                ; r
    v_lshl_add_u32 v{vA}, v{vG}, 3, v{vU}    ; 8g+r
    v_lshrrev_b32 v{vU}, 1, v{vU}            ; bit1(r)
    v_and_b32 v{vB}, 1, v{vG}
    v_lshl_add_u32 v{vU}, v{vB}, 1, v{vU}    ; f
    v_lshlrev_b32 v{vU}, 5, v{vU}
    v_lshl_add_u32 v{vU}, v{vA}, 7, v{vU}
    v_lshl_add_u32 v{vU}, v{vW}, 3, v{vU}
    v_add_u32 v{vTrd}, s{sLds}, v{vU}
    v_xor_b32 v{vTrd+1}, 32, v{vTrd}
    v_xor_b32 v{vTrd+2}, 64, v{vTrd}
    v_xor_b32 v{vTrd+3}, 96, v{vTrd}
    v_lshrrev_b32 v{vU}, 1, v{vT}
    v_and_b32 v{vU}, 3, v{vU}
    v_lshlrev_b32 v{vU}, 5, v{vU}
    v_lshl_add_u32 v{vU}, v{vT}, 7, v{vU}
    v_lshl_add_u32 v{vU}, v{vW}, 3, v{vU}
    s_lshl_b32 s{sT0}, s{sWave}, 11
    s_add_u32 s{sT0}, s{sT0}, {L_WD}
    v_add_u32 v{vWrd}, s{sT0}, v{vU}
    v_xor_b32 v{vWrd+1}, 32, v{vWrd}
    v_xor_b32 v{vWrd+2}, 64, v{vWrd}
    v_xor_b32 v{vWrd+3}, 96, v{vWrd}
    v_mov_b32 v{vOnes}, 0x3f803f80
    v_mov_b32 v{vOnes+1}, 0x3f803f80
    v_mov_b32 v{vOnes+2}, 0x3f803f80
    v_mov_b32 v{vOnes+3}, 0x3f803f80
    s_lshl_b32 s{sT0}, s{sR}, 15             ; r*32 rows*1024 B
    s_lshl_b32 s{sT1}, s{sC}, 9
    s_add_u32 s{sT0}, s{sT0}, s{sT1}
    """)
    mksrd(rWO, P_WO, f"s{sT0}", 31 * 1024 + 512)
    a(f"s_lshl_b32 s{sT0}, s{sW0}, 10\ns_add_u32 s{sT0}, s{sT0}, s{sT1}")
    mksrd(rWD, P_WD, f"s{sT0}", 15 * 1024 + 512)
    a("s_waitcnt lgkmcnt(0)")
    a(f"""
    s_add_u32 s{sEn}, s{sEp}, 1
    s_not_b32 s{sEnn}, s{sEn}
    s_and_b32 s{sT0}, s{sEn}, s{sMask}
    v_mov_b32 v{vTag}, s{sT0}
    """)
    if True:
        a("s_cmp_ge_u32 s2, 240")
        a("s_cbranch_scc1 L_noT2")
        vm.wait("T")
        a("L_noT2:")
        while nk < WK and nk < 6:
            issueK(nk); nk += 1
        a("s_cmp_ge_u32 s2, 240")
        a("s_cbranch_scc1 L_noT3")
        for t in range(2):
            for nt in range(4):
                for hf in range(2):
                    d = vF + (t * 4 + nt) * 4 + 2 * hf
                    a(f"ds_read_b64_tr_b16 v[{d}:{d+1}], v{vTrd+nt} offset:{6*4096 + (32*t + 4*hf)*128}")
            if t == 0: a("s_waitcnt lgkmcnt(0)")
        for nt in range(4):
            d = vF + nt * 4
            a(f"v_mfma_f32_16x16x32_bf16 v[{vS+4*nt}:{vS+4*nt+3}], v[{d}:{d+3}], v[{vX}:{vX+3}], 0")
        a("s_waitcnt lgkmcnt(0)")
        for nt in range(4):
            d = vF + 16 + nt * 4
            a(f"v_mfma_f32_16x16x32_bf16 v[{vS+4*nt}:{vS+4*nt+3}], v[{d}:{d+3}], v[{vX+4}:{vX+7}], v[{vS+4*nt}:{vS+4*nt+3}]")
        a(f"""
        s_lshl_b32 s{sT0}, s{sWave}, 9
        s_add_u32 s{sT0}, s{sT0}, {L_P0}
        v_lshlrev_b32 v{vA}, 8, v{vN}
        v_lshl_add_u32 v{vA}, v{vG}, 4, v{vA}
        v_add_u32 v{vA}, s{sT0}, v{vA}
        s_mov_b32 exec_lo, 0x00030003
        s_mov_b32 exec_hi, 0x00030003
        """)
        for nt in range(4):
            a(f"ds_write_b128 v{vA}, v[{vS+4*nt}:{vS+4*nt+3}] offset:{64*nt}")
        a("s_mov_b64 exec, -1")
        a("s_waitcnt lgkmcnt(0)")
        a("L_noT3:")
    a("s_barrier   ; B0")
    stamp("B0")
    order = [f"K{u}" for u in range(8)] + ["V0"]
    issued = nk
    landed = 0
    while issued < 9:
        vm.wait(order[issued - WK]) if issued - WK >= 0 else None
        if issued < 8: issueK(issued)
        else: issueV(0)
        issued += 1
    a("s_barrier   ; B1 (q ready)")
    stamp("B1")
    a(f"""
    v_and_b32 v{vT}, 3, v{vN}
    v_lshlrev_b32 v{vT}, 8, v{vT}
    v_lshl_add_u32 v{vT}, v{vG}, 4, v{vT}
    v_add_u32 v{vA}, {L_Q}, v{vT}
    """)
    for j in range(4):
        a(f"ds_read_b128 v[{vQ+4*j}:{vQ+4*j+3}], v{vA} offset:{64*j}")
    def readK(u):
        b = vF + (u & 1) * 16
        for j in range(4):
            a(f"ds_read_b128 v[{b+4*j}:{b+4*j+3}], v{vKrd+j} offset:{u*4096}")
    unit_order = order[:]
    vm.wait("K0")
    readK(0)
    nextV = 1
    def maybe_issue_V():
        nonlocal nextV
        j = nextV
        hist = unit_order
        if cfg.WV < len(hist):
            vm.wait(hist[len(hist) - cfg.WV])
        issueV(j); hist.append(f"V{j}"); nextV += 1
    for u in range(8):
        if u < 7:
            vm.wait(f"K{u+1}")
            readK(u + 1)
            a("s_waitcnt lgkmcnt(4)")
        else:
            a("s_waitcnt lgkmcnt(0)")
        b = vF + (u & 1) * 16
        for j in range(4):
            c = "0" if j == 0 else f"v[{vS+4*u}:{vS+4*u+3}]"
            a(f"v_mfma_f32_16x16x32_bf16 v[{vS+4*u}:{vS+4*u+3}], v[{b+4*j}:{b+4*j+3}], v[{vQ+4*j}:{vQ+4*j+3}], {c}")
        if u < 7: maybe_issue_V()
        if u == 7 and cfg.p2pos == "afterS": issueP2()
    if cfg.p2pos == "end": issueP2()
    stamp("S")
    if cfg.mimic:
        a(f"s_mov_b32 s{sT0}, {f2u(SCALE):#x}")
        for i in range(0, 32, 2):
            x0, x1 = vS + i, vS + i + 1
            a(f"""
            v_cvt_pk_bf16_f32 v{vT}, v{x0}, v{x1}
            v_lshlrev_b32 v{x0}, 16, v{vT}
            v_and_b32 v{x1}, 0xffff0000, v{vT}
            v_mul_f32 v{x0}, s{sT0}, v{x0}
            v_mul_f32 v{x1}, s{sT0}, v{x1}
            v_cvt_pk_bf16_f32 v{vT}, v{x0}, v{x1}
            v_lshlrev_b32 v{x0}, 16, v{vT}
            v_and_b32 v{x1}, 0xffff0000, v{vT}
            """)
        cexp = LOG2E
    else:
        cexp = LOG2E * SCALE
    a(f"v_max3_f32 v{vM}, v{vS}, v{vS+1}, v{vS+2}")
    i = 3
    while i < 32:
        if i + 1 < 32:
            a(f"v_max3_f32 v{vM}, v{vM}, v{vS+i}, v{vS+i+1}"); i += 2
        else:
            a(f"v_max_f32 v{vM}, v{vM}, v{vS+i}"); i += 1
    a(f"""
    s_lshl_b32 s{sT0}, s{sWave}, 4
    s_add_u32 s{sT0}, s{sT0}, {L_MX}
    v_lshlrev_b32 v{vA}, 6, v{vN}
    v_lshl_add_u32 v{vA}, v{vG}, 2, v{vA}
    v_add_u32 v{vA}, s{sT0}, v{vA}
    s_mov_b32 exec_lo, 0x000f000f
    s_mov_b32 exec_hi, 0x000f000f
    ds_write_b32 v{vA}, v{vM}
    s_mov_b64 exec, -1
    v_and_b32 v{vT}, 3, v{vN}
    v_lshlrev_b32 v{vT}, 6, v{vT}
    v_add_u32 v{vA}, {L_MX}, v{vT}
    s_waitcnt lgkmcnt(0)
    s_barrier   ; B2
    """)
    stamp("B2")
    for i in range(4):
        a(f"ds_read_b128 v[{vF+4*i}:{vF+4*i+3}], v{vA} offset:{16*i}")
    a("s_waitcnt lgkmcnt(0)")
    a(f"v_max3_f32 v{vM}, v{vF}, v{vF+1}, v{vF+2}")
    for i in range(3, 15, 2):
        a(f"v_max3_f32 v{vM}, v{vM}, v{vF+i}, v{vF+i+1}")
    a(f"v_max_f32 v{vM}, v{vM}, v{vF+15}")
    a(f"""
    s_mov_b32 s{sT0}, {f2u(cexp):#x}
    v_mul_f32 v{vM}, s{sT0}, v{vM}          ; M' = c*M
    v_sub_f32 v{vNM}, 0, v{vM}
    """)
    for i in range(32):
        a(f"v_fma_f32 v{vS+i}, v{vS+i}, s{sT0}, v{vNM}")
    for i in range(32):
        a(f"v_exp_f32 v{vS+i}, v{vS+i}")
    for i in range(16):
        a(f"v_cvt_pk_bf16_f32 v{vP+i}, v{vS+2*i}, v{vS+2*i+1}")
    for ks in range(4):
        u0, u1 = 2 * ks, 2 * ks + 1
        vm.wait(f"V{u1}")
        def rd(dt):
            d = vF + 4 * dt
            a(f"ds_read_b64_tr_b16 v[{d}:{d+1}], v{vVrd+dt} offset:{slotV(u0)}")
            a(f"ds_read_b64_tr_b16 v[{d+2}:{d+3}], v{vVrd+dt} offset:{slotV(u1)}")
        for dt in range(4): rd(dt)
        cL = "0" if ks == 0 else f"v[{vL}:{vL+3}]"
        a(f"v_mfma_f32_16x16x32_bf16 v[{vL}:{vL+3}], v[{vOnes}:{vOnes+3}], v[{vP+4*ks}:{vP+4*ks+3}], {cL}")
        for dt in range(8):
            if dt + 4 < 8:
                a("s_waitcnt lgkmcnt(6)")
            else:
                a(f"s_waitcnt lgkmcnt({2*(7-dt)})")
            d = vF + 4 * dt
            c = "0" if ks == 0 else f"v[{vOa+4*dt}:{vOa+4*dt+3}]"
            a(f"v_mfma_f32_16x16x32_bf16 v[{vOa+4*dt}:{vOa+4*dt+3}], v[{d}:{d+3}], v[{vP+4*ks}:{vP+4*ks+3}], {c}")
            if dt + 4 < 8: rd(dt + 4)
    stamp("PV")
    a(f"""
    s_add_u32 s{sT0}, s{sLds}, {SPARE}
    v_mul_u32_u24 v{vA}, 528, v{vN}
    v_lshl_add_u32 v{vA}, v{vG}, 4, v{vA}
    v_add_u32 v{vA}, s{sT0}, v{vA}
    v_mul_u32_u24 v{vB}, 528, v{vN}
    v_add_u32 v{vB}, s{sT0}, v{vB}
    s_mov_b32 exec_lo, 0x000f000f
    s_mov_b32 exec_hi, 0x000f000f
    """)
    for dt in range(8):
        a(f"ds_write_b128 v{vA}, v[{vOa+4*dt}:{vOa+4*dt+3}] offset:{64*dt}")
    a(f"""
    s_mov_b32 exec_lo, 0x0000000f
    s_mov_b32 exec_hi, 0
    ds_write_b32 v{vB}, v{vL} offset:512
    s_mov_b64 exec, -1
    s_mul_i32 s{sT0}, s{sWave}, 528
    s_add_u32 s{sT0}, s{sT0}, {SPARE}
    v_lshlrev_b32 v{vT}, 4, v{vLane}
    v_add_u32 v{vA}, s{sT0}, v{vT}
    v_add_u32 v{vB}, {2*WREG}, v{vA}
    s_lshl_b32 s{sT0}, s{sPidx}, 11
    s_lshl_b32 s{sT1}, s{sWave}, 9
    s_add_u32 s{sT0}, s{sT0}, s{sT1}
    s_add_u32 s{sT0}, s{sT0}, {WS_AP}
    v_add_u32 v{vC}, s{sT0}, v{vT}
    s_lshl_b32 s{sT0}, s{sPidx}, 2
    s_add_u32 s{sT0}, s{sT0}, s{sWave}
    s_lshl_b32 s{sT0}, s{sT0}, 4
    s_add_u32 s{sT0}, s{sT0}, {WS_ML}
    v_mov_b32 v{vD}, s{sT0}
    v_cmp_eq_u32 vcc, 32, v{vLane}
    v_cndmask_b32 v{vC}, v{vC}, v{vD}, vcc
    v_readlane_b32 s{sMp}, v{vM}, s{sWave}
    s_waitcnt lgkmcnt(0)
    s_barrier   ; B3
    s_mov_b32 exec_lo, -1
    s_mov_b32 exec_hi, 1
    ds_read_b128 v[{vF}:{vF+3}], v{vA}
    ds_read_b128 v[{vF+4}:{vF+7}], v{vA} offset:{WREG}
    ds_read_b128 v[{vF+8}:{vF+11}], v{vB}
    ds_read_b128 v[{vF+12}:{vF+15}], v{vB} offset:{WREG}
    s_waitcnt lgkmcnt(2)
    """)
    for k in range(4): a(f"v_add_f32 v{vF+k}, v{vF+k}, v{vF+4+k}")
    a("s_waitcnt lgkmcnt(0)")
    for k in range(4): a(f"v_add_f32 v{vF+8+k}, v{vF+8+k}, v{vF+12+k}")
    for k in range(4): a(f"v_add_f32 v{vF+k}, v{vF+k}, v{vF+8+k}")
    a(f"v_mov_b32 v{vT}, v{vF}")
    for k in range(4): a(f"v_bfi_b32 v{vF+k}, s{sMask}, v{vTag}, v{vF+k}")
    a(f"""
    s_mov_b32 exec_lo, 0
    s_mov_b32 exec_hi, 1
    v_mov_b32 v{vF}, s{sMp}
    v_mov_b32 v{vF+1}, v{vT}
    v_mov_b32 v{vF+2}, s{sEn}
    v_mov_b32 v{vF+3}, s{sEnn}
    s_mov_b32 exec_lo, -1
    buffer_store_dwordx4 v[{vF}:{vF+3}], v{vC}, {srd(rWS)}, 0 offen sc1
    s_mov_b64 exec, -1
    """)
    vm.issue("pub1")
    stamp("pub1")
    a(f"""
    s_lshr_b32 s{sT0}, s{sWave}, 1          ; b
    s_lshl_b32 s{sT1}, s{sHkv}, 1
    s_add_u32 s{sT1}, s{sT1}, s{sT0}
    s_lshl_b32 s{sT1}, s{sT1}, 4
    s_lshr_b32 s{sT2}, s{sIdx}, 3
    v_lshrrev_b32 v{vT}, 2, v{vLane}
    v_add_u32 v{vT}, s{sT1}, v{vT}          ; pidx
    v_lshlrev_b32 v{vU}, 2, v{vT}
    v_add_u32 v{vU}, s{sT2}, v{vU}
    v_lshlrev_b32 v{vU}, 4, v{vU}
    v_add_u32 v{vB}, {WS_ML}, v{vU}
    s_lshl_b32 s{sT2}, s{sT2}, 9            ; hh*512
    s_lshr_b32 s{sT3}, s{sIdx}, 1
    s_and_b32 s{sT3}, s{sT3}, 3             ; dq
    s_lshl_b32 s{sT3}, s{sT3}, 7            ; 8*dq*16
    s_add_u32 s{sT2}, s{sT2}, s{sT3}
    s_and_b32 s{sT3}, s{sWave}, 1
    s_lshl_b32 s{sT3}, s{sT3}, 6            ; 4*half*16
    s_add_u32 s{sT2}, s{sT2}, s{sT3}
    s_add_u32 s{sT2}, s{sT2}, {WS_AP}
    v_lshlrev_b32 v{vT}, 11, v{vT}
    v_and_b32 v{vU}, 3, v{vLane}
    v_lshl_add_u32 v{vT}, v{vU}, 4, v{vT}
    v_add_u32 v{vA}, s{sT2}, v{vT}
    """)
    vm.wait("WD")
    for nt in range(4):
        for hf in range(2):
            d = vA2 + 4 * nt + 2 * hf
            a(f"ds_read_b64_tr_b16 v[{d}:{d+1}], v{vTrd+nt} offset:{7*4096 + 4*hf*128}")
    for nt in range(4):
        a(f"ds_read_b64_tr_b16 v[{vAd+2*nt}:{vAd+2*nt+1}], v{vWrd+nt}")
    vSel = V("Sel", 4); vHb = V("Hb", 8, 2); vOb = V("Ob", 16, 4); vGb = V("Gb")
    a(f"""
    v_lshrrev_b32 v{vT}, 1, v{vN}
    v_and_b32 v{vU}, 1, v{vN}
    v_lshlrev_b32 v{vW}, 5, v{vU}
    v_lshl_add_u32 v{vW}, v{vG}, 3, v{vW}
    v_add_u32 v{vW}, {L_H}, v{vW}            ; h address
    v_lshlrev_b32 v{vU}, 6, v{vU}
    v_lshl_add_u32 v{vU}, v{vG}, 4, v{vU}
    v_add_u32 v{vU}, {L_O2}, v{vU}           ; o address
    v_mov_b32 v{vD}, {L_ZERO}
    """)
    for t in range(4):
        a(f"v_cmp_eq_u32 vcc, {t}, v{vT}")
        a(f"v_cndmask_b32 v{vSel+t}, v{vD}, v{vU}, vcc")
        a(f"v_cndmask_b32 v{vC}, v{vD}, v{vW}, vcc")
        a(f"ds_read_b64 v[{vHb+2*t}:{vHb+2*t+1}], v{vC}")
    a(f"""
    s_lshr_b32 s{sT0}, s{sWave}, 1
    s_lshl_b32 s{sT0}, s{sT0}, 2
    s_add_u32 s{sT0}, s{sT0}, {L_G}
    v_mov_b32 v{vT}, s{sT0}
    ds_read_b32 v{vGb}, v{vT}
    s_waitcnt lgkmcnt(0)
    """)
    for t in range(4):
        c = "0" if t == 0 else f"v[{vAcc}:{vAcc+3}]"
        a(f"v_mfma_f32_16x16x16_bf16 v[{vAcc}:{vAcc+3}], v[{vAd+2*t}:{vAd+2*t+1}], v[{vHb+2*t}:{vHb+2*t+1}], {c}")
    vO = vF; vML = vF + 4; y = vF + 8; y2 = vF + 9; z = vF + 10
    a(f"s_mov_b32 s{sSpin}, {cfg.spin}")
    a("L_h1:")
    a(f"""
    buffer_load_dwordx4 v[{vO}:{vO+3}], v{vA}, {srd(rWS)}, 0 offen sc1
    buffer_load_dwordx4 v[{vML}:{vML+3}], v{vB}, {srd(rWS)}, 0 offen sc1
    s_waitcnt vmcnt(0)
    v_bitop3_b32 v{y}, v{vO}, v{vO+1}, v{vTag} bitop3:0x7e
    v_bitop3_b32 v{y2}, v{vO+2}, v{vO+3}, v{vTag} bitop3:0x7e
    v_or_b32 v{y}, v{y}, v{y2}
    v_and_b32 v{y}, s{sMask}, v{y}
    v_xor_b32 v{y2}, s{sEn}, v{vML+2}
    v_xor_b32 v{z}, s{sEnn}, v{vML+3}
    v_or3_b32 v{y}, v{y}, v{y2}, v{z}
    v_cmp_ne_u32 vcc, 0, v{y}
    s_cbranch_vccz L_h1_done
    s_sub_u32 s{sSpin}, s{sSpin}, 1
    s_cmp_lg_u32 s{sSpin}, 0
    s_cbranch_scc1 L_h1
    """)
    a("L_h1_done:")
    vm.q = []
    stamp("h1")
    m = vF + 8; t1 = vF + 9; f = vF + 10; lf = vF + 11; t2 = vF + 12
    a(f"""
    v_max_f32_dpp v{m}, v{vML}, v{vML} row_ror:4 row_mask:0xf bank_mask:0xf
    v_not_b32 v{t2}, s{sMask}
    v_max_f32_dpp v{m}, v{m}, v{m} row_ror:8 row_mask:0xf bank_mask:0xf
    v_and_b32 v{vO}, v{vO}, v{t2}
    v_and_b32 v{vO+1}, v{vO+1}, v{t2}
    v_mov_b32 v{t1}, v{m}
    v_and_b32 v{vO+2}, v{vO+2}, v{t2}
    v_and_b32 v{vO+3}, v{vO+3}, v{t2}
    v_permlane32_swap_b32 v{m}, v{t1}
    v_max_f32 v{m}, v{m}, v{t1}
    v_mov_b32 v{t1}, v{m}
    v_permlane16_swap_b32 v{m}, v{t1}
    v_max_f32 v{m}, v{m}, v{t1}
    v_sub_f32 v{f}, v{vML}, v{m}
    v_exp_f32 v{f}, v{f}
    v_mul_f32 v{lf}, v{f}, v{vML+1}
    v_mul_f32 v{vO}, v{f}, v{vO}
    v_mul_f32 v{vO+1}, v{f}, v{vO+1}
    v_mul_f32 v{vO+2}, v{f}, v{vO+2}
    v_mul_f32 v{vO+3}, v{f}, v{vO+3}
    v_mov_b32 v{t1}, v{lf}
    v_permlane32_swap_b32 v{vO}, v{vO+1}
    v_permlane32_swap_b32 v{vO+2}, v{vO+3}
    v_permlane32_swap_b32 v{lf}, v{t1}
    v_add_f32 v{vO}, v{vO}, v{vO+1}
    v_add_f32 v{vO+2}, v{vO+2}, v{vO+3}
    v_add_f32 v{lf}, v{lf}, v{t1}
    v_mov_b32 v{t1}, v{lf}
    v_permlane16_swap_b32 v{vO}, v{vO+2}
    v_permlane16_swap_b32 v{lf}, v{t1}
    v_add_f32 v{vO}, v{vO}, v{vO+2}
    v_add_f32 v{lf}, v{lf}, v{t1}
    v_add_f32_dpp v{vO}, v{vO}, v{vO} row_ror:4 row_mask:0xf bank_mask:0xf
    v_add_f32_dpp v{lf}, v{lf}, v{lf} row_ror:4 row_mask:0xf bank_mask:0xf
    v_add_f32_dpp v{vO}, v{vO}, v{vO} row_ror:8 row_mask:0xf bank_mask:0xf
    v_add_f32_dpp v{lf}, v{lf}, v{lf} row_ror:8 row_mask:0xf bank_mask:0xf
    v_rcp_f32 v{lf}, v{lf}
    v_mul_f32 v{vO}, v{vO}, v{vGb}
    v_mul_f32 v{vO}, v{vO}, v{lf}
    v_cvt_pk_bf16_f32 v{vO}, v{vO}, v{vO}
    v_and_b32 v{t1}, 1, v{vG}
    v_lshlrev_b32 v{t1}, 1, v{t1}
    v_lshrrev_b32 v{t2}, 1, v{vG}
    v_or_b32 v{t1}, v{t1}, v{t2}
    v_and_b32 v{t2}, 3, v{vLane}
    v_lshl_add_u32 v{t1}, v{t2}, 2, v{t1}
    v_lshlrev_b32 v{t1}, 1, v{t1}
    s_lshr_b32 s{sT0}, s{sWave}, 1
    s_lshl_b32 s{sT0}, s{sT0}, 6
    s_and_b32 s{sT1}, s{sWave}, 1
    s_lshl_b32 s{sT1}, s{sT1}, 5
    s_add_u32 s{sT0}, s{sT0}, s{sT1}
    s_add_u32 s{sT0}, s{sT0}, {L_O2}
    v_add_u32 v{t1}, s{sT0}, v{t1}
    s_mov_b32 exec_lo, 0x000f000f
    s_mov_b32 exec_hi, 0x000f000f
    ds_write_b16 v{t1}, v{vO}
    s_mov_b64 exec, -1
    s_lshl_b32 s{sT0}, s{sR}, 1
    s_add_u32 s{sT0}, s{sT0}, s{sC}
    s_lshl_b32 s{sT0}, s{sT0}, 11
    s_lshl_b32 s{sT1}, s{sWave}, 9
    s_add_u32 s{sT0}, s{sT0}, s{sT1}
    s_add_u32 s{sT0}, s{sT0}, {WS_OP}
    v_lshlrev_b32 v{vC}, 7, v{vG}
    v_lshl_add_u32 v{vC}, v{vN}, 4, v{vC}
    v_add_u32 v{vC}, s{sT0}, v{vC}
    s_waitcnt lgkmcnt(0)
    s_barrier   ; B4
    """)
    for t in range(4):
        a(f"ds_read_b128 v[{vOb+4*t}:{vOb+4*t+3}], v{vSel+t}")
    for t in range(4):
        a(f"s_waitcnt lgkmcnt({3-t})")
        a(f"v_mfma_f32_16x16x32_bf16 v[{vAcc}:{vAcc+3}], v[{vA2+4*t}:{vA2+4*t+3}], v[{vOb+4*t}:{vOb+4*t+3}], v[{vAcc}:{vAcc+3}]")
    for k in range(4): a(f"v_bfi_b32 v{vAcc+k}, s{sMask}, v{vTag}, v{vAcc+k}")
    a(f"""
    s_mov_b32 exec_lo, 0x00ff00ff
    s_mov_b32 exec_hi, 0x00ff00ff
    buffer_store_dwordx4 v[{vAcc}:{vAcc+3}], v{vC}, {srd(rWS)}, 0 offen sc1
    s_mov_b64 exec, -1
    """)
    stamp("pub2")
    a("s_cmp_ge_u32 s2, 64")
    a("s_cbranch_scc1 L_fin_stamps" if cfg.stamps else "s_cbranch_scc1 L_end")
    g0 = vF; g1 = vF + 4; y = vF + 8; y2 = vF + 9; t1 = vF + 10; t2 = vF + 11
    a(f"""
    s_lshr_b32 s{sT0}, s2, 5
    s_lshl_b32 s{sT0}, s{sT0}, 11
    s_lshr_b32 s{sT1}, s2, 3
    s_and_b32 s{sT1}, s{sT1}, 3
    s_lshl_b32 s{sT1}, s{sT1}, 9
    s_add_u32 s{sT0}, s{sT0}, s{sT1}
    s_lshr_b32 s{sT1}, s2, 1
    s_and_b32 s{sT1}, s{sT1}, 3
    s_lshl_b32 s{sT1}, s{sT1}, 7
    s_add_u32 s{sT0}, s{sT0}, s{sT1}
    s_and_b32 s{sT1}, s2, 1
    s_lshl_b32 s{sT1}, s{sT1}, 6
    s_add_u32 s{sT0}, s{sT0}, s{sT1}
    s_add_u32 s{sT0}, s{sT0}, {WS_OP}
    v_lshrrev_b32 v{vT}, 2, v0
    v_lshlrev_b32 v{vT}, 12, v{vT}
    v_and_b32 v{vU}, 3, v0
    v_lshl_add_u32 v{vT}, v{vU}, 4, v{vT}
    v_add_u32 v{vA}, s{sT0}, v{vT}
    s_mov_b32 s{sT3}, 262144
    v_not_b32 v{vD}, s{sMask}
    s_mov_b32 s{sSpin}, {cfg.spin}
    """)
    a("L_h2:")
    a(f"""
    buffer_load_dwordx4 v[{g0}:{g0+3}], v{vA}, {srd(rWS)}, 0 offen sc1
    buffer_load_dwordx4 v[{g1}:{g1+3}], v{vA}, {srd(rWS)}, s{sT3} offen sc1
    s_waitcnt vmcnt(0)
    v_bitop3_b32 v{y}, v{g0}, v{g0+1}, v{vTag} bitop3:0x7e
    v_bitop3_b32 v{y2}, v{g0+2}, v{g0+3}, v{vTag} bitop3:0x7e
    v_bitop3_b32 v{t1}, v{g1}, v{g1+1}, v{vTag} bitop3:0x7e
    v_bitop3_b32 v{t2}, v{g1+2}, v{g1+3}, v{vTag} bitop3:0x7e
    v_or3_b32 v{y}, v{y}, v{y2}, v{t1}
    v_or_b32 v{y}, v{y}, v{t2}
    v_and_b32 v{y}, s{sMask}, v{y}
    v_cmp_ne_u32 vcc, 0, v{y}
    s_cbranch_vccz L_h2_done
    s_sub_u32 s{sSpin}, s{sSpin}, 1
    s_cmp_lg_u32 s{sSpin}, 0
    s_cbranch_scc1 L_h2
    """)
    a("L_h2_done:")
    stamp("h2")
    for k in range(4):
        a(f"v_and_b32 v{g0+k}, v{g0+k}, v{vD}")
        a(f"v_and_b32 v{g1+k}, v{g1+k}, v{vD}")
    for k in range(4): a(f"v_add_f32 v{g0+k}, v{g0+k}, v{g1+k}")
    a(f"""
    v_permlane32_swap_b32 v{g0}, v{g0+1}
    v_permlane32_swap_b32 v{g0+2}, v{g0+3}
    v_add_f32 v{g0}, v{g0}, v{g0+1}
    v_add_f32 v{g0+2}, v{g0+2}, v{g0+3}
    v_permlane16_swap_b32 v{g0}, v{g0+2}
    v_add_f32 v{g0}, v{g0}, v{g0+2}
    v_add_f32_dpp v{g0}, v{g0}, v{g0} row_ror:4 row_mask:0xf bank_mask:0xf
    v_add_f32_dpp v{g0}, v{g0}, v{g0} row_ror:8 row_mask:0xf bank_mask:0xf
    v_and_b32 v{t1}, 1, v{vG}
    v_lshlrev_b32 v{t1}, 1, v{t1}
    v_lshrrev_b32 v{t2}, 1, v{vG}
    v_or_b32 v{t1}, v{t1}, v{t2}
    v_and_b32 v{t2}, 3, v{vLane}
    v_lshl_add_u32 v{t1}, v{t2}, 2, v{t1}
    v_lshlrev_b32 v{t1}, 2, v{t1}
    s_lshl_b32 s{sT0}, s{sWave}, 6
    s_add_u32 s{sT0}, s{sT0}, {L_FIN}
    v_add_u32 v{t1}, s{sT0}, v{t1}
    s_mov_b32 exec_lo, 0x000f000f
    s_mov_b32 exec_hi, 0x000f000f
    ds_write_b32 v{t1}, v{g0}
    s_mov_b64 exec, -1
    v_lshlrev_b32 v{t2}, 4, v{t2}
    v_add_u32 v{t2}, {L_FIN}, v{t2}
    s_lshr_b32 s{sT0}, s2, 5
    s_lshl_b32 s{sT0}, s{sT0}, 9
    s_lshr_b32 s{sT1}, s2, 3
    s_and_b32 s{sT1}, s{sT1}, 3
    s_lshl_b32 s{sT1}, s{sT1}, 7
    s_add_u32 s{sT0}, s{sT0}, s{sT1}
    s_and_b32 s{sT1}, s2, 1
    s_lshl_b32 s{sT1}, s{sT1}, 6
    s_add_u32 s{sT0}, s{sT0}, s{sT1}
    s_lshr_b32 s{sT1}, s2, 1
    s_and_b32 s{sT1}, s{sT1}, 3
    s_lshl_b32 s{sT1}, s{sT1}, 3
    s_add_u32 s{sT0}, s{sT0}, s{sT1}
    v_and_b32 v{vT}, 1, v{vLane}
    v_lshlrev_b32 v{vT}, 10, v{vT}
    v_bfe_u32 v{vU}, v{vLane}, 1, 1
    v_lshl_add_u32 v{vT}, v{vU}, 5, v{vT}
    v_add_u32 v{vT}, s{sT0}, v{vT}
    """)
    mksrd(rO, P_OUT, None, 2048)
    a(f"""
    s_waitcnt lgkmcnt(0)
    s_barrier   ; B5
    s_cmp_lg_u32 s{sWave}, 0
    s_cbranch_scc1 {"L_fin_stamps" if cfg.stamps else "L_end"}
    s_mov_b32 exec_lo, 15
    s_mov_b32 exec_hi, 0
    ds_read_b128 v[{vF}:{vF+3}], v{t2}
    ds_read_b128 v[{vF+4}:{vF+7}], v{t2} offset:64
    ds_read_b128 v[{vF+12}:{vF+15}], v{t2} offset:128
    ds_read_b128 v[{vF+16}:{vF+19}], v{t2} offset:192
    s_waitcnt lgkmcnt(0)
    """)
    for k in range(4):
        a(f"v_add_f32 v{vF+k}, v{vF+k}, v{vF+4+k}")
        a(f"v_add_f32 v{vF+12+k}, v{vF+12+k}, v{vF+16+k}")
    for k in range(4): a(f"v_add_f32 v{vF+k}, v{vF+k}, v{vF+12+k}")
    a(f"""
    v_cvt_pk_bf16_f32 v{vF}, v{vF}, v{vF+1}
    v_cvt_pk_bf16_f32 v{vF+1}, v{vF+2}, v{vF+3}
    buffer_store_dwordx2 v[{vF}:{vF+1}], v{vT}, {srd(rO)}, 0 offen
    s_cmp_lg_u32 s2, 0
    s_cbranch_scc1 {"L_fin_stamps0" if cfg.stamps else "L_end"}
    s_mov_b32 exec_lo, 1
    v_mov_b32 v{vT}, {WS_EPOCH}
    v_mov_b32 v{vU}, s{sEn}
    buffer_store_dword v{vU}, v{vT}, {srd(rWS)}, 0 offen sc1
    """)
    def dump_stamps(vA_, vD_):
        a("s_waitcnt vmcnt(0)")
        a(f"s_memrealtime s[{sTl}:{sTl+1}]")
        a("s_waitcnt lgkmcnt(0)")
        a(f"s_lshl_b32 s{sSpin}, s2, 3\ns_add_u32 s{sSpin}, s{sSpin}, s{sWave}\ns_lshl_b32 s{sSpin}, s{sSpin}, 6\ns_add_u32 s{sSpin}, s{sSpin}, {WS_STAMP}")
        a(f"v_mov_b32 v{vA_}, s{sSpin}")
        a("s_mov_b32 exec_lo, 1\ns_mov_b32 exec_hi, 0")
        for i in range(11): a(f"v_mov_b32 v{vD_+i}, s{streg(i)}")
        a(f"v_mov_b32 v{vD_+11}, s{sTl}")
        for i in range(3):
            a(f"buffer_store_dwordx4 v[{vD_+4*i}:{vD_+4*i+3}], v{vA_}, {srd(rWS)}, 0 offen offset:{16*i}")
    if cfg.stamps:
        a("L_fin_stamps0:")
        a("s_mov_b64 exec, -1")
        a("L_fin_stamps:")
        dump_stamps(vA, vF)
    a("s_endpgm")
    nv_stream = V.n

    H = Regs(8, 256)
    a("L_helper:")
    nstamp[0] = 1
    hx0 = H("x0", 4, 4); hx1 = H("x1", 4, 4); hgw = H("gw", 4, 4)
    hA = H("A"); hB = H("B"); hC = H("C"); hD = H("D"); hz0 = H("z0"); hz1 = H("z1")
    ht = [H(f"t{i}") for i in range(8)]
    hq = H("q", 16, 4)
    mksrd(rO, P_GW, None, 1024)
    a(f"""
    v_lshlrev_b32 v{hA}, 4, v{vLane}
    buffer_load_dwordx4 v[{hx0}:{hx0+3}], v{hA}, {srd(rX)}, 0 offen
    buffer_load_dwordx4 v[{hx1}:{hx1+3}], v{hA}, {srd(rX)}, 0 offen offset:1024
    buffer_load_dwordx4 v[{hgw}:{hgw+3}], v{hA}, {srd(rO)}, 0 offen
    v_mov_b32 v{ht[0]}, 0
    v_mov_b32 v{hB}, {L_ZERO}
    ds_write_b32 v{hB}, v{ht[0]}
    ds_write_b32 v{hB}, v{ht[0]} offset:4
    ds_write_b32 v{hB}, v{ht[0]} offset:8
    ds_write_b32 v{hB}, v{ht[0]} offset:12
    s_waitcnt lgkmcnt(0)
    s_add_u32 s{sEn}, s{sEp}, 1
    s_not_b32 s{sEnn}, s{sEn}
    s_and_b32 s{sT0}, s{sEn}, s{sMask}
    v_mov_b32 v{vTag}, s{sT0}
    v_mov_b32 v{hz0}, 0
    v_mov_b32 v{hz1}, 0
    s_waitcnt vmcnt(0)
    """)
    for k in range(4):
        for (xr, z) in ((hx0, hz0), (hx1, hz1)):
            a(f"""
            v_lshlrev_b32 v{ht[0]}, 16, v{xr+k}
            v_and_b32 v{ht[1]}, 0xffff0000, v{xr+k}
            v_lshlrev_b32 v{ht[2]}, 16, v{hgw+k}
            v_and_b32 v{ht[3]}, 0xffff0000, v{hgw+k}
            v_mul_f32 v{ht[0]}, v{ht[0]}, v{ht[2]}
            v_mul_f32 v{ht[1]}, v{ht[1]}, v{ht[3]}
            v_cvt_pk_bf16_f32 v{ht[0]}, v{ht[0]}, v{ht[1]}
            v_and_b32 v{ht[1]}, 0xffff0000, v{ht[0]}
            v_lshlrev_b32 v{ht[0]}, 16, v{ht[0]}
            v_add_f32 v{z}, v{z}, v{ht[0]}
            v_add_f32 v{z}, v{z}, v{ht[1]}
            """)
    for z in (hz0, hz1):
        for n in (1, 2, 4, 8):
            a(f"v_add_f32_dpp v{z}, v{z}, v{z} row_ror:{n} row_mask:0xf bank_mask:0xf")
    for sw in ("16", "32"):
        for z in (hz0, hz1):
            a(f"v_mov_b32 v{ht[0]}, v{z}\nv_permlane{sw}_swap_b32 v{z}, v{ht[0]}\nv_add_f32 v{z}, v{z}, v{ht[0]}")
    a(f"""
    v_cvt_pk_bf16_f32 v{ht[0]}, v{hz0}, v{hz1}
    v_lshlrev_b32 v{hz0}, 16, v{ht[0]}
    v_and_b32 v{hz1}, 0xffff0000, v{ht[0]}
    s_mov_b32 s{sT0}, {f2u(-LOG2E):#x}
    v_mul_f32 v{hz0}, s{sT0}, v{hz0}
    v_mul_f32 v{hz1}, s{sT0}, v{hz1}
    v_exp_f32 v{hz0}, v{hz0}
    v_exp_f32 v{hz1}, v{hz1}
    v_add_f32 v{hz0}, 1.0, v{hz0}
    v_add_f32 v{hz1}, 1.0, v{hz1}
    v_rcp_f32 v{hz0}, v{hz0}
    v_rcp_f32 v{hz1}, v{hz1}
    v_cvt_pk_bf16_f32 v{ht[0]}, v{hz0}, v{hz1}
    v_lshlrev_b32 v{hz0}, 16, v{ht[0]}       ; g0
    v_and_b32 v{hz1}, 0xffff0000, v{ht[0]}   ; g1
    v_mov_b32 v{hB}, {L_G}
    ds_write_b32 v{hB}, v{hz0}
    ds_write_b32 v{hB}, v{hz1} offset:4
    v_sub_f32 v{hz0}, 1.0, v{hz0}
    v_sub_f32 v{hz1}, 1.0, v{hz1}
    v_cvt_pk_bf16_f32 v{ht[0]}, v{hz0}, v{hz1}
    v_lshlrev_b32 v{hz0}, 16, v{ht[0]}       ; 1-g0
    v_and_b32 v{hz1}, 0xffff0000, v{ht[0]}   ; 1-g1
    s_lshl_b32 s{sT0}, s{sKh}, 15
    s_add_u32 s{sT0}, s{sT0}, {WS_QP}
    s_lshl_b32 s{sT1}, s{sMat}, 1
    s_add_u32 s{sT1}, s{sT1}, s{sKh}
    s_mul_i32 s{sT1}, s{sT1}, 14336
    s_add_u32 s{sT1}, s{sT1}, {WS_FP}
    s_mov_b32 s{sT3}, 7168
    s_cmp_lt_u32 s2, 128
    s_cselect_b32 s{sT0}, s{sT0}, s{sT1}
    s_cselect_b32 s{sT1}, 16384, s{sT3}
    s_lshl_b32 s{sT2}, s{sCg}, 8
    s_add_u32 s{sT0}, s{sT0}, s{sT2}
    v_and_b32 v{ht[0]}, 1, v{vG}
    v_mul_lo_u32 v{hA}, v{ht[0]}, s{sT1}
    v_lshl_add_u32 v{hA}, v{vN}, 4, v{hA}
    v_add_u32 v{hA}, s{sT0}, v{hA}
    v_lshlrev_b32 v{hB}, 8, v{ht[0]}
    v_lshl_add_u32 v{hB}, v{vN}, 4, v{hB}
    v_add_u32 v{hB}, {L_P0}, v{hB}
    s_lshr_b32 s{sT0}, s{sIdx}, 4
    s_lshl_b32 s{sT0}, s{sT0}, 14
    s_lshl_b32 s{sT1}, s{sHkv}, 11
    s_add_u32 s{sT0}, s{sT0}, s{sT1}
    s_add_u32 s{sT0}, s{sT0}, {WS_QP}
    v_lshlrev_b32 v{ht[1]}, 4, v{vLane}
    v_add_u32 v{hC}, s{sT0}, v{ht[1]}
    s_waitcnt lgkmcnt(0)
    s_barrier   ; B0
    """)
    stamp("hB0")
    a("s_cmp_ge_u32 s2, 240")
    a("s_cbranch_scc1 L_h_nopub")
    for wv in range(4):
        a(f"ds_read_b128 v[{hq+4*wv}:{hq+4*wv+3}], v{hB} offset:{512*wv}")
    a("s_waitcnt lgkmcnt(0)")
    for k in range(4):
        a(f"v_add_f32 v{hq+k}, v{hq+k}, v{hq+4+k}")
        a(f"v_add_f32 v{hq+8+k}, v{hq+8+k}, v{hq+12+k}")
    for k in range(4): a(f"v_add_f32 v{hq+k}, v{hq+k}, v{hq+8+k}")
    for k in range(4): a(f"v_bfi_b32 v{hq+k}, s{sMask}, v{vTag}, v{hq+k}")
    a(f"""
    s_mov_b32 exec_hi, 0
    buffer_store_dwordx4 v[{hq}:{hq+3}], v{hA}, {srd(rWS)}, 0 offen sc1
    s_mov_b64 exec, -1
    """)
    a("L_h_nopub:")
    stamp("hpub")
    a(f"s_mov_b32 s{sSpin}, {cfg.spin}")
    a(f"s_mov_b32 s{sT3}, 32768")
    a(f"v_not_b32 v{hD}, s{sMask}")
    a("L_hq:")
    a(f"""
    buffer_load_dwordx4 v[{hq}:{hq+3}], v{hC}, {srd(rWS)}, 0 offen sc1
    buffer_load_dwordx4 v[{hq+4}:{hq+7}], v{hC}, {srd(rWS)}, 0 offen offset:1024 sc1
    buffer_load_dwordx4 v[{hq+8}:{hq+11}], v{hC}, {srd(rWS)}, s{sT3} offen sc1
    buffer_load_dwordx4 v[{hq+12}:{hq+15}], v{hC}, {srd(rWS)}, s{sT3} offen offset:1024 sc1
    s_waitcnt vmcnt(0)
    """)
    for i in range(8):
        a(f"v_bitop3_b32 v{ht[i]}, v{hq+2*i}, v{hq+2*i+1}, v{vTag} bitop3:0x7e")
    a(f"""
    v_or3_b32 v{ht[0]}, v{ht[0]}, v{ht[1]}, v{ht[2]}
    v_or3_b32 v{ht[3]}, v{ht[3]}, v{ht[4]}, v{ht[5]}
    v_or3_b32 v{ht[0]}, v{ht[0]}, v{ht[6]}, v{ht[7]}
    v_or_b32 v{ht[0]}, v{ht[0]}, v{ht[3]}
    v_and_b32 v{ht[0]}, s{sMask}, v{ht[0]}
    v_cmp_ne_u32 vcc, 0, v{ht[0]}
    s_cbranch_vccz L_hq_done
    """)
    if cfg.sleep: a(f"s_sleep {cfg.sleep}")
    a(f"""
    s_sub_u32 s{sSpin}, s{sSpin}, 1
    s_cmp_lg_u32 s{sSpin}, 0
    s_cbranch_scc1 L_hq
    """)
    a("L_hq_done:")
    stamp("hq")
    for i in range(16): a(f"v_and_b32 v{hq+i}, v{hq+i}, v{hD}")
    for i in range(8): a(f"v_add_f32 v{hq+i}, v{hq+i}, v{hq+8+i}")
    for i in range(4): a(f"v_cvt_pk_bf16_f32 v{hq+i}, v{hq+2*i}, v{hq+2*i+1}")
    a(f"""
    v_lshlrev_b32 v{hA}, 3, v{vLane}
    v_add_u32 v{hA}, {L_Q}, v{hA}
    ds_write_b64 v{hA}, v[{hq}:{hq+1}]
    ds_write_b64 v{hA}, v[{hq+2}:{hq+3}] offset:512
    v_and_b32 v{ht[0]}, 3, v{vLane}
    v_bfe_u32 v{ht[1]}, v{vLane}, 2, 1
    v_bfe_u32 v{ht[2]}, v{vLane}, 3, 1
    v_lshlrev_b32 v{hC}, 4, v{ht[0]}
    v_mul_u32_u24 v{ht[3]}, 7168, v{ht[1]}
    v_mul_u32_u24 v{ht[4]}, 14336, v{ht[2]}
    v_add3_u32 v{hC}, v{hC}, v{ht[3]}, v{ht[4]}
    s_lshl_b32 s{sT0}, s{sW0}, 2
    s_add_u32 s{sT0}, s{sT0}, {WS_FP}
    v_add_u32 v{hC}, s{sT0}, v{hC}
    s_mov_b32 s{sT3}, 28672
    s_waitcnt lgkmcnt(0)
    s_barrier   ; B1
    s_mov_b32 s{sSpin}, {cfg.spin}
    """)
    a("L_hf:")
    a(f"""
    buffer_load_dwordx4 v[{hq}:{hq+3}], v{hC}, {srd(rWS)}, 0 offen sc1
    buffer_load_dwordx4 v[{hq+4}:{hq+7}], v{hC}, {srd(rWS)}, s{sT3} offen sc1
    s_waitcnt vmcnt(0)
    """)
    for i in range(4):
        a(f"v_bitop3_b32 v{ht[3+i]}, v{hq+2*i}, v{hq+2*i+1}, v{vTag} bitop3:0x7e")
    a(f"""
    v_or3_b32 v{ht[3]}, v{ht[3]}, v{ht[4]}, v{ht[5]}
    v_or_b32 v{ht[3]}, v{ht[3]}, v{ht[6]}
    v_and_b32 v{ht[3]}, s{sMask}, v{ht[3]}
    v_cmp_ne_u32 vcc, 0, v{ht[3]}
    s_cbranch_vccz L_hf_done
    """)
    if cfg.sleep: a(f"s_sleep {cfg.sleep}")
    a(f"""
    s_sub_u32 s{sSpin}, s{sSpin}, 1
    s_cmp_lg_u32 s{sSpin}, 0
    s_cbranch_scc1 L_hf
    """)
    a("L_hf_done:")
    stamp("hf")
    for i in range(8): a(f"v_and_b32 v{hq+i}, v{hq+i}, v{hD}")
    for i in range(8): a(f"v_add_f32_dpp v{hq+i}, v{hq+i}, v{hq+i} row_ror:8 row_mask:0xf bank_mask:0xf")
    a(f"v_cmp_eq_u32 vcc, 1, v{ht[1]}")
    a(f"v_cndmask_b32 v{hz0}, v{hz0}, v{hz1}, vcc")
    a(f"s_mov_b32 s{sT0}, {f2u(-LOG2E):#x}")
    for k in range(4):
        g = hq + k; u = hq + 4 + k; e = hq + 8 + k
        a(f"v_mul_f32 v{e}, s{sT0}, v{g}")
    for k in range(4): a(f"v_exp_f32 v{hq+8+k}, v{hq+8+k}")
    for k in range(4): a(f"v_add_f32 v{hq+8+k}, 1.0, v{hq+8+k}")
    for k in range(4): a(f"v_rcp_f32 v{hq+8+k}, v{hq+8+k}")
    for k in range(4): a(f"v_mul_f32 v{hq+k}, v{hq+k}, v{hq+8+k}")
    for k in range(4): a(f"v_mul_f32 v{hq+k}, v{hq+k}, v{hq+4+k}")
    for k in range(4): a(f"v_mul_f32 v{hq+k}, v{hq+k}, v{hz0}")
    a(f"""
    s_and_b32 s{sT0}, s{sR}, 1
    s_cmp_eq_u32 s{sT0}, 0
    s_cselect_b32 s{sT1}, 3, 4
    s_cselect_b32 s{sT2}, 4, 0
    v_cmp_eq_u32 vcc, s{sT1}, v{ht[0]}
    v_cndmask_b32 v{hq+2}, v{hq+2}, 0, vcc
    v_cndmask_b32 v{hq+3}, v{hq+3}, 0, vcc
    v_cmp_eq_u32 vcc, s{sT2}, v{ht[0]}
    v_cndmask_b32 v{hq}, v{hq}, 0, vcc
    v_cndmask_b32 v{hq+1}, v{hq+1}, 0, vcc
    v_cvt_pk_bf16_f32 v{hq}, v{hq}, v{hq+1}
    v_cvt_pk_bf16_f32 v{hq+1}, v{hq+2}, v{hq+3}
    v_lshlrev_b32 v{hA}, 5, v{ht[1]}
    v_lshl_add_u32 v{hA}, v{ht[0]}, 3, v{hA}
    v_add_u32 v{hA}, {L_H}, v{hA}
    ds_write_b64 v{hA}, v[{hq}:{hq+1}]
    s_waitcnt lgkmcnt(0)
    s_barrier   ; B2
    """)
    if cfg.stamps:
        dump_stamps(hA, hq)
    a("L_end:")
    a("s_endpgm")
    nv = max(nv_stream, H.n)
    a.names = names
    return a, nv, nsgpr

HEADER = """; Fused decode step: out = g*Attn(x) + (1-g)*FFN(x), one launch, 256 workgroups (one per CU), 5 waves each.
; @launch grid=(256,1,1) block=(320,1,1) lds=163840
.amdgcn_target "amdgcn-amd-amdhsa--gfx950"
.text
"""
def full(cfg):
    a, nv, ns = gen(cfg)
    nvr = (nv + 7) // 8 * 8
    kd = f"""
.section .rodata,"a"
.p2align 6
.amdhsa_kernel {KNAME}
  .amdhsa_next_free_vgpr {nvr}
  .amdhsa_next_free_sgpr {max(ns, 96)}
  .amdhsa_accum_offset {nvr}
  .amdhsa_group_segment_fixed_size 0
  .amdhsa_kernarg_size 104
  .amdhsa_user_sgpr_count 2
  .amdhsa_user_sgpr_kernarg_segment_ptr 1
  .amdhsa_system_sgpr_workgroup_id_x 1
  .amdhsa_float_denorm_mode_32 3
.end_amdhsa_kernel
"""
    return HEADER + a.text() + kd, nv, ns, a.nnops

if __name__ == "__main__":
    import argparse
    ap = argparse.ArgumentParser()
    ap.add_argument("-o", default="k.s")
    ap.add_argument("opts", nargs="*")
    args = ap.parse_args()
    kw = {}
    for o in args.opts:
        k, v = o.split("=")
        kw[k] = (v if k in ("kvpol", "wpol", "p2pos") else int(v))
    if kw.get("kvpol") == "def": kw["kvpol"] = ""
    if kw.get("wpol") == "def": kw["wpol"] = ""
    cfg = Cfg(**kw)
    txt, nv, ns, nn = full(cfg)
    open(args.o, "w").write(txt)
    print(f"wrote {args.o}: vgprs {nv} sgprs {ns} nops {nn} lines {txt.count(chr(10))}")
```

```python
import sys, math
from asmb import *

KNAME = "gated_mix__gqa_block_cached__swiglu_ffn__decode_kernel"

WS_EPOCH = 0
WS_QP = 0x1000
WS_FP = WS_QP + 65536
WS_AP = 0x20000
WS_ML = WS_AP + 0x80000
WS_OP = WS_ML + 0x4000
WS_STAMP = WS_OP + 0x80000
WS_SIZE = WS_STAMP + 0x40000

WREG = 36864
SPARE = 32768
MISC = 4 * WREG
L_WD = MISC
L_P0 = MISC + 0x2000
L_Q = L_P0 + 0x800
L_MX = L_Q + 0x400
L_H = L_MX + 0x100
L_ZERO = L_H + 0x40
L_O2 = L_ZERO + 0x40
L_G = L_O2 + 0x80
L_FIN = L_G + 0x100
LDS_BYTES = 163840
assert L_FIN + 256 <= LDS_BYTES

TAGMASK = 0x3FF
LOG2E = 1.4426950408889634
SCALE = 128 ** -0.5

def f2u(x):
    import struct
    return struct.unpack("<I", struct.pack("<f", x))[0]

class Cfg:
    kvpol = "nt"
    wpol = "nt"
    WK = 3
    WV = 99
    p2pos = "end"
    stamps = False
    mimic = False
    spin = 1 << 17
    sleep = 0
    def __init__(self, **kw):
        for k, v in kw.items():
            assert hasattr(self, k), k
            setattr(self, k, v)

def gen(cfg):
    a = Asm()
    S = Regs(30, 100)
    P_X, P_K, P_V, P_WQ, P_WO, P_WG, P_WU, P_WD, P_GW, P_OUT, P_DBG, P_WS = 4, 6, 8, 10, 12, 16, 18, 20, 22, 24, 26, 28
    sWave = 3
    sEp = S("ep"); sEn = S("en"); sEnn = S("enn"); sMask = S("mask")
    sHkv = S("hkv"); sIdx = S("idx"); sLds = S("lds"); sSo = S("so")
    sCg = S("cg"); sKh = S("kh"); sMat = S("mat"); sStride = S("stride")
    sT0 = S("t0"); sT1 = S("t1"); sT2 = S("t2"); sT3 = S("t3")
    sSpin = S("spin"); sPidx = S("pidx"); sR = S("r"); sC = S("c"); sW0 = S("w0"); sMp = S("mp")
    rK = S("rK", 4, 4); rV = S("rV", 4, 4); rT = S("rT", 4, 4); rWO = S("rWO", 4, 4); rWD = S("rWD", 4, 4)
    rWS = S("rWS", 4, 4); rX = S("rX", 4, 4); rO = S("rO", 4, 4)
    sSt0 = S("stamp0", 2, 2) if cfg.stamps else None
    sTl = S("stampl", 2, 2) if cfg.stamps else None
    def streg(i): return sSt0 if i == 0 else 4 + 2 * (i - 1)
    nsgpr = S.n
    def srd(r): return f"s[{r}:{r+3}]"
    nstamp = [0]; names = []
    def stamp(name):
        if not cfg.stamps: return
        i = nstamp[0]; assert i < 11
        a(f"s_memrealtime s[{streg(i)}:{streg(i)+1}]"); nstamp[0] += 1
        names.append(name)
    def mksrd(r, plo, off_s, nrec):
        if off_s is None:
            a(f"s_mov_b32 s{r}, s{plo}\ns_mov_b32 s{r+1}, s{plo+1}")
        else:
            a(f"s_add_u32 s{r}, s{plo}, {off_s}\ns_addc_u32 s{r+1}, s{plo+1}, 0")
        a(f"s_mov_b32 s{r+2}, {nrec}\ns_mov_b32 s{r+3}, 0x20000")

    a.raw(f".globl {KNAME}\n.p2align 8\n.type {KNAME},@function\n{KNAME}:")
    a("s_cmp_ge_u32 s2, 256")
    a("s_cbranch_scc1 L_end")
    if cfg.stamps: stamp("start")
    a("s_load_dwordx16 s[4:19], s[0:1], 0")
    a("s_load_dwordx8 s[20:27], s[0:1], 64")
    a("s_load_dwordx2 s[28:29], s[0:1], 96")
    V = Regs(1, 256)
    vLane = V("lane"); vN = V("n"); vG = V("g"); vT = V("t"); vU = V("u"); vW = V("w"); vTag = V("tag")
    a(f"""
    v_lshrrev_b32 v{vT}, 6, v0
    v_and_b32 v{vLane}, 63, v0
    v_readfirstlane_b32 s{sWave}, v{vT}
    v_and_b32 v{vN}, 15, v{vLane}
    v_lshrrev_b32 v{vG}, 4, v{vLane}
    s_and_b32 s{sHkv}, s2, 7
    s_lshr_b32 s{sIdx}, s2, 3
    s_mov_b32 s{sMask}, {TAGMASK}
    s_sub_u32 s{sT0}, s2, 128
    s_cmp_ge_u32 s{sT0}, 56
    s_cselect_b32 s{sMat}, 1, 0
    s_mul_i32 s{sT1}, s{sMat}, 56
    s_sub_u32 s{sT0}, s{sT0}, s{sT1}
    s_cmp_ge_u32 s{sT0}, 28
    s_cselect_b32 s{sKh}, 1, 0
    s_mul_i32 s{sT1}, s{sKh}, 28
    s_sub_u32 s{sCg}, s{sT0}, s{sT1}
    s_and_b32 s{sT0}, s2, 63
    s_lshr_b32 s{sT1}, s2, 6
    s_mov_b32 s{sStride}, 3584
    s_cmp_lt_u32 s2, 128
    s_cselect_b32 s{sCg}, s{sT0}, s{sCg}
    s_cselect_b32 s{sKh}, s{sT1}, s{sKh}
    s_cselect_b32 s{sStride}, 8192, s{sStride}
    s_cselect_b32 s{sMat}, 0, s{sMat}
    s_lshr_b32 s{sT0}, s{sIdx}, 4            ; b
    s_lshl_b32 s{sT1}, s{sHkv}, 1
    s_add_u32 s{sT1}, s{sT1}, s{sT0}         ; hkv*2+b
    s_lshl_b32 s{sT1}, s{sT1}, 4
    s_and_b32 s{sT2}, s{sIdx}, 15            ; split
    s_add_u32 s{sPidx}, s{sT1}, s{sT2}
    s_lshr_b32 s{sT0}, s{sIdx}, 1            ; rr
    s_lshl_b32 s{sR}, s{sHkv}, 4
    s_add_u32 s{sR}, s{sR}, s{sT0}
    s_and_b32 s{sC}, s{sIdx}, 1
    s_mul_i32 s{sW0}, s{sR}, 14
    s_and_b32 s{sW0}, s{sW0}, -4
    s_mul_i32 s{sLds}, s{sWave}, {WREG}
    s_waitcnt lgkmcnt(0)
    s_load_dword s{sEp}, s[{P_WS}:{P_WS+1}], {WS_EPOCH}
    """)
    mksrd(rWS, P_WS, None, WS_SIZE)
    mksrd(rX, P_X, None, 2048)
    a(f"s_cmp_eq_u32 s{sWave}, 4")
    a("s_cbranch_scc1 L_helper")

    vm = VM(a)
    vToff = V("Toff", 2); vKoff = V("Koff", 4); vVoff = V("Voff", 2); vWOoff = V("WOoff", 2); vWDoff = V("WDoff")
    vKrd = V("Krd", 4); vVrd = V("Vrd", 8); vTrd = V("Trd", 4); vWrd = V("Wrd", 4)
    vX = V("X", 8, 4)
    vF = V("F", 32, 4)
    vS = V("S", 32, 4)
    vP = V("P", 16, 4)
    vQ = V("Q", 16, 4)
    vOa = V("Oa", 32, 4)
    vL = V("L", 4, 4); vOnes = V("ones", 4, 4)
    vA2 = V("A2", 16, 4); vAd = V("Ad", 8, 4); vAcc = V("Acc", 4, 4)
    vM = V("M"); vNM = V("NM")
    vA = V("addrA"); vB = V("addrB"); vC = V("addrC"); vD = V("addrD")
    a(f"""
    s_cmp_eq_u32 s{sMat}, 1
    s_cselect_b32 s{sT0}, s{P_WU}, s{P_WG}
    s_cselect_b32 s{sT1}, s{P_WU+1}, s{P_WG+1}
    s_cmp_lt_u32 s2, 128
    s_cselect_b32 s{sT0}, s{P_WQ}, s{sT0}
    s_cselect_b32 s{sT1}, s{P_WQ+1}, s{sT1}
    s_mul_i32 s{sT2}, s{sKh}, s{sStride}
    s_lshl_b32 s{sT2}, s{sT2}, 8
    s_lshl_b32 s{sT3}, s{sCg}, 7
    s_add_u32 s{sT2}, s{sT2}, s{sT3}
    s_add_u32 s{rT}, s{sT0}, s{sT2}
    s_addc_u32 s{rT+1}, s{sT1}, 0
    s_mul_i32 s{rT+2}, s{sStride}, 255
    s_add_u32 s{rT+2}, s{rT+2}, 128
    s_mov_b32 s{rT+3}, 0x20000
    v_and_b32 v{vT}, 1, v{vN}
    v_lshlrev_b32 v{vT}, 10, v{vT}
    v_lshl_add_u32 v{vT}, v{vG}, 4, v{vT}
    s_lshl_b32 s{sT0}, s{sKh}, 9
    s_lshl_b32 s{sT1}, s{sWave}, 7
    s_add_u32 s{sT0}, s{sT0}, s{sT1}
    v_add_u32 v{vA}, s{sT0}, v{vT}
    v_lshrrev_b32 v{vT}, 3, v{vLane}
    v_and_b32 v{vU}, 7, v{vLane}
    v_and_b32 v{vW}, 2, v{vT}
    v_xor_b32 v{vU}, v{vU}, v{vW}
    v_lshlrev_b32 v{vU}, 4, v{vU}
    s_lshl_b32 s{sT0}, s{sWave}, 6
    v_add_u32 v{vW}, s{sT0}, v{vT}
    v_mul_lo_u32 v{vW}, v{vW}, s{sStride}
    v_add_u32 v{vToff}, v{vW}, v{vU}
    v_xor_b32 v{vToff+1}, 64, v{vToff}
    s_lshl_b32 s{sT0}, s{sWave}, 7
    v_lshl_add_u32 v{vW}, v{vT}, 10, v{vU}
    v_add_u32 v{vWOoff}, s{sT0}, v{vW}
    v_xor_b32 v{vWOoff+1}, 64, v{vWOoff}
    v_and_b32 v{vU}, 7, v{vLane}
    v_and_b32 v{vW}, 6, v{vT}
    v_xor_b32 v{vU}, v{vU}, v{vW}
    v_lshlrev_b32 v{vU}, 4, v{vU}
    v_lshl_add_u32 v{vW}, v{vT}, 10, v{vU}
    v_add_u32 v{vWDoff}, s{sT0}, v{vW}
    """)
    def dma(voff, srdr, soff, ldsoff, pol, tag):
        if isinstance(ldsoff, tuple):
            a(f"s_add_u32 m0, {ldsoff[1]}, {ldsoff[2]}")
        else:
            a(f"s_add_u32 m0, s{sLds}, {ldsoff}")
        if isinstance(soff, int):
            if soff == 0: so = "0"
            else:
                a(f"s_mov_b32 s{sSo}, {soff}"); so = f"s{sSo}"
        else: so = soff
        a(f"buffer_load_dwordx4 v{voff}, {srd(srdr)}, {so} offen {pol} lds")
        vm.issue(tag)
    hasT = "L_noT1"
    a("s_cmp_ge_u32 s2, 240")
    a(f"s_cbranch_scc1 {hasT}")
    a(f"buffer_load_dwordx4 v[{vX}:{vX+3}], v{vA}, {srd(rX)}, 0 offen"); vm.issue("X")
    a(f"buffer_load_dwordx4 v[{vX+4}:{vX+7}], v{vA}, {srd(rX)}, 0 offen offset:64"); vm.issue("X")
    a(f"s_lshl_b32 s{sT0}, s{sStride}, 3")
    a(f"s_mov_b32 s{sT1}, 0")
    for i in range(8):
        dma(vToff + (i & 1), rT, f"s{sT1}", 6 * 4096 + i * 1024, cfg.wpol, "T")
        if i < 7: a(f"s_add_u32 s{sT1}, s{sT1}, s{sT0}")
    a(f"{hasT}:")
    a(f"""
    s_lshr_b32 s{sT0}, s{sIdx}, 4
    s_lshl_b32 s{sT0}, s{sT0}, 3
    s_add_u32 s{sT0}, s{sT0}, s{sHkv}        ; b*8+hkv
    s_lshl_b32 s{sT0}, s{sT0}, 21
    s_and_b32 s{sT1}, s{sIdx}, 15
    s_lshl_b32 s{sT1}, s{sT1}, 17
    s_add_u32 s{sT0}, s{sT0}, s{sT1}
    """)
    mksrd(rK, P_K, f"s{sT0}", 131072)
    mksrd(rV, P_V, f"s{sT0}", 131072)
    a(f"""
    s_lshl_b32 s{sT0}, s{sWave}, 10
    v_lshlrev_b32 v{vT}, 8, v{vG}
    v_add_u32 v{vT}, s{sT0}, v{vT}           ; wv*1024 + k4*256
    v_xor_b32 v{vU}, v{vN}, v{vG}
    v_lshl_add_u32 v{vKoff}, v{vU}, 4, v{vT}
    v_xor_b32 v{vKoff+1}, 64, v{vKoff}
    v_xor_b32 v{vKoff+2}, 128, v{vKoff}
    v_xor_b32 v{vKoff+3}, 192, v{vKoff}
    v_lshlrev_b32 v{vU}, 1, v{vG}
    v_xor_b32 v{vU}, v{vN}, v{vU}
    v_lshl_add_u32 v{vVoff}, v{vU}, 4, v{vT}
    v_xor_b32 v{vVoff+1}, 128, v{vVoff}
    """)
    def slotV(j): return SPARE if j == 0 else (j - 1) * 4096
    def issueK(u):
        for i in range(4):
            dma(vKoff + i, rK, (16 * u + 4 * i) * 1024, u * 4096 + i * 1024, cfg.kvpol, f"K{u}")
    def issueV(j):
        for i in range(4):
            dma(vVoff + (i & 1), rV, (16 * j + 4 * i) * 1024, slotV(j) + i * 1024, cfg.kvpol, f"V{j}")
    def issueP2():
        for i in range(4):
            dma(vWOoff + (i & 1), rWO, 8192 * i, 7 * 4096 + i * 1024, cfg.wpol, "WO")
        for i in range(2):
            a(f"s_lshl_b32 s{sT0}, s{sWave}, 11")
            a(f"s_add_u32 s{sT0}, s{sT0}, {L_WD + 1024 * i}")
            dma(vWDoff, rWD, 8192 * i, ("abs", f"s{sT0}", 0), cfg.wpol, "WD")
    WK = cfg.WK
    nk = 0
    first = max(1, WK - 2)
    for u in range(first): issueK(u); nk += 1
    a(f"""
    v_xor_b32 v{vU}, v{vG}, v{vN}
    v_lshlrev_b32 v{vU}, 4, v{vU}
    v_lshl_add_u32 v{vU}, v{vN}, 8, v{vU}
    v_add_u32 v{vKrd}, s{sLds}, v{vU}
    v_xor_b32 v{vKrd+1}, 64, v{vKrd}
    v_xor_b32 v{vKrd+2}, 128, v{vKrd}
    v_xor_b32 v{vKrd+3}, 192, v{vKrd}
    v_lshrrev_b32 v{vT}, 2, v{vLane}         ; rho = l>>2
    v_and_b32 v{vU}, 7, v{vT}
    v_lshlrev_b32 v{vU}, 5, v{vU}
    v_lshl_add_u32 v{vU}, v{vT}, 8, v{vU}
    v_and_b32 v{vW}, 3, v{vLane}             ; c4
    v_lshl_add_u32 v{vU}, v{vW}, 3, v{vU}
    v_add_u32 v{vVrd}, s{sLds}, v{vU}
    """)
    for dt in range(1, 8): a(f"v_xor_b32 v{vVrd+dt}, {dt << 5}, v{vVrd}")
    a(f"""
    v_and_b32 v{vU}, 3, v{vT}                ; r
    v_lshl_add_u32 v{vA}, v{vG}, 3, v{vU}    ; 8g+r
    v_lshrrev_b32 v{vU}, 1, v{vU}            ; bit1(r)
    v_and_b32 v{vB}, 1, v{vG}
    v_lshl_add_u32 v{vU}, v{vB}, 1, v{vU}    ; f
    v_lshlrev_b32 v{vU}, 5, v{vU}
    v_lshl_add_u32 v{vU}, v{vA}, 7, v{vU}
    v_lshl_add_u32 v{vU}, v{vW}, 3, v{vU}
    v_add_u32 v{vTrd}, s{sLds}, v{vU}
    v_xor_b32 v{vTrd+1}, 32, v{vTrd}
    v_xor_b32 v{vTrd+2}, 64, v{vTrd}
    v_xor_b32 v{vTrd+3}, 96, v{vTrd}
    v_lshrrev_b32 v{vU}, 1, v{vT}
    v_and_b32 v{vU}, 3, v{vU}
    v_lshlrev_b32 v{vU}, 5, v{vU}
    v_lshl_add_u32 v{vU}, v{vT}, 7, v{vU}
    v_lshl_add_u32 v{vU}, v{vW}, 3, v{vU}
    s_lshl_b32 s{sT0}, s{sWave}, 11
    s_add_u32 s{sT0}, s{sT0}, {L_WD}
    v_add_u32 v{vWrd}, s{sT0}, v{vU}
    v_xor_b32 v{vWrd+1}, 32, v{vWrd}
    v_xor_b32 v{vWrd+2}, 64, v{vWrd}
    v_xor_b32 v{vWrd+3}, 96, v{vWrd}
    v_mov_b32 v{vOnes}, 0x3f803f80
    v_mov_b32 v{vOnes+1}, 0x3f803f80
    v_mov_b32 v{vOnes+2}, 0x3f803f80
    v_mov_b32 v{vOnes+3}, 0x3f803f80
    s_lshl_b32 s{sT0}, s{sR}, 15             ; r*32 rows*1024 B
    s_lshl_b32 s{sT1}, s{sC}, 9
    s_add_u32 s{sT0}, s{sT0}, s{sT1}
    """)
    mksrd(rWO, P_WO, f"s{sT0}", 31 * 1024 + 512)
    a(f"s_lshl_b32 s{sT0}, s{sW0}, 10\ns_add_u32 s{sT0}, s{sT0}, s{sT1}")
    mksrd(rWD, P_WD, f"s{sT0}", 15 * 1024 + 512)
    a("s_waitcnt lgkmcnt(0)")
    a(f"""
    s_add_u32 s{sEn}, s{sEp}, 1
    s_not_b32 s{sEnn}, s{sEn}
    s_and_b32 s{sT0}, s{sEn}, s{sMask}
    v_mov_b32 v{vTag}, s{sT0}
    """)
    if True:
        a("s_cmp_ge_u32 s2, 240")
        a("s_cbranch_scc1 L_noT2")
        vm.wait("T")
        a("L_noT2:")
        while nk < WK and nk < 6:
            issueK(nk); nk += 1
        a("s_cmp_ge_u32 s2, 240")
        a("s_cbranch_scc1 L_noT3")
        for t in range(2):
            for nt in range(4):
                for hf in range(2):
                    d = vF + (t * 4 + nt) * 4 + 2 * hf
                    a(f"ds_read_b64_tr_b16 v[{d}:{d+1}], v{vTrd+nt} offset:{6*4096 + (32*t + 4*hf)*128}")
            if t == 0: a("s_waitcnt lgkmcnt(0)")
        for nt in range(4):
            d = vF + nt * 4
            a(f"v_mfma_f32_16x16x32_bf16 v[{vS+4*nt}:{vS+4*nt+3}], v[{d}:{d+3}], v[{vX}:{vX+3}], 0")
        a("s_waitcnt lgkmcnt(0)")
        for nt in range(4):
            d = vF + 16 + nt * 4
            a(f"v_mfma_f32_16x16x32_bf16 v[{vS+4*nt}:{vS+4*nt+3}], v[{d}:{d+3}], v[{vX+4}:{vX+7}], v[{vS+4*nt}:{vS+4*nt+3}]")
        a(f"""
        s_lshl_b32 s{sT0}, s{sWave}, 9
        s_add_u32 s{sT0}, s{sT0}, {L_P0}
        v_lshlrev_b32 v{vA}, 8, v{vN}
        v_lshl_add_u32 v{vA}, v{vG}, 4, v{vA}
        v_add_u32 v{vA}, s{sT0}, v{vA}
        s_mov_b32 exec_lo, 0x00030003
        s_mov_b32 exec_hi, 0x00030003
        """)
        for nt in range(4):
            a(f"ds_write_b128 v{vA}, v[{vS+4*nt}:{vS+4*nt+3}] offset:{64*nt}")
        a("s_mov_b64 exec, -1")
        a("s_waitcnt lgkmcnt(0)")
        a("L_noT3:")
    if cfg.stamps:
        for i in range(1, 11): a(f"s_mov_b32 s{streg(i)}, 0")
    a("s_barrier   ; B0")
    stamp("B0")
    order = [f"K{u}" for u in range(8)] + ["V0"]
    issued = nk
    landed = 0
    while issued < 9:
        vm.wait(order[issued - WK]) if issued - WK >= 0 else None
        if issued < 8: issueK(issued)
        else: issueV(0)
        issued += 1
    a("s_barrier   ; B1 (q ready)")
    stamp("B1")
    a(f"""
    v_and_b32 v{vT}, 3, v{vN}
    v_lshlrev_b32 v{vT}, 8, v{vT}
    v_lshl_add_u32 v{vT}, v{vG}, 4, v{vT}
    v_add_u32 v{vA}, {L_Q}, v{vT}
    """)
    for j in range(4):
        a(f"ds_read_b128 v[{vQ+4*j}:{vQ+4*j+3}], v{vA} offset:{64*j}")
    def readK(u):
        b = vF + (u & 1) * 16
        for j in range(4):
            a(f"ds_read_b128 v[{b+4*j}:{b+4*j+3}], v{vKrd+j} offset:{u*4096}")
    unit_order = order[:]
    vm.wait("K0")
    readK(0)
    nextV = 1
    def maybe_issue_V():
        nonlocal nextV
        j = nextV
        hist = unit_order
        if cfg.WV < len(hist):
            vm.wait(hist[len(hist) - cfg.WV])
        issueV(j); hist.append(f"V{j}"); nextV += 1
    for u in range(8):
        if u < 7:
            vm.wait(f"K{u+1}")
            readK(u + 1)
            a("s_waitcnt lgkmcnt(4)")
        else:
            a("s_waitcnt lgkmcnt(0)")
        b = vF + (u & 1) * 16
        for j in range(4):
            c = "0" if j == 0 else f"v[{vS+4*u}:{vS+4*u+3}]"
            a(f"v_mfma_f32_16x16x32_bf16 v[{vS+4*u}:{vS+4*u+3}], v[{b+4*j}:{b+4*j+3}], v[{vQ+4*j}:{vQ+4*j+3}], {c}")
        if u < 7: maybe_issue_V()
        if u == 7 and cfg.p2pos == "afterS": issueP2()
    if cfg.p2pos == "end": issueP2()
    stamp("S")
    if cfg.mimic:
        a(f"s_mov_b32 s{sT0}, {f2u(SCALE):#x}")
        for i in range(0, 32, 2):
            x0, x1 = vS + i, vS + i + 1
            a(f"""
            v_cvt_pk_bf16_f32 v{vT}, v{x0}, v{x1}
            v_lshlrev_b32 v{x0}, 16, v{vT}
            v_and_b32 v{x1}, 0xffff0000, v{vT}
            v_mul_f32 v{x0}, s{sT0}, v{x0}
            v_mul_f32 v{x1}, s{sT0}, v{x1}
            v_cvt_pk_bf16_f32 v{vT}, v{x0}, v{x1}
            v_lshlrev_b32 v{x0}, 16, v{vT}
            v_and_b32 v{x1}, 0xffff0000, v{vT}
            """)
        cexp = LOG2E
    else:
        cexp = LOG2E * SCALE
    a(f"v_max3_f32 v{vM}, v{vS}, v{vS+1}, v{vS+2}")
    i = 3
    while i < 32:
        if i + 1 < 32:
            a(f"v_max3_f32 v{vM}, v{vM}, v{vS+i}, v{vS+i+1}"); i += 2
        else:
            a(f"v_max_f32 v{vM}, v{vM}, v{vS+i}"); i += 1
    a(f"""
    s_lshl_b32 s{sT0}, s{sWave}, 4
    s_add_u32 s{sT0}, s{sT0}, {L_MX}
    v_lshlrev_b32 v{vA}, 6, v{vN}
    v_lshl_add_u32 v{vA}, v{vG}, 2, v{vA}
    v_add_u32 v{vA}, s{sT0}, v{vA}
    s_mov_b32 exec_lo, 0x000f000f
    s_mov_b32 exec_hi, 0x000f000f
    ds_write_b32 v{vA}, v{vM}
    s_mov_b64 exec, -1
    v_and_b32 v{vT}, 3, v{vN}
    v_lshlrev_b32 v{vT}, 6, v{vT}
    v_add_u32 v{vA}, {L_MX}, v{vT}
    s_waitcnt lgkmcnt(0)
    s_barrier   ; B2
    """)
    stamp("B2")
    for i in range(4):
        a(f"ds_read_b128 v[{vF+4*i}:{vF+4*i+3}], v{vA} offset:{16*i}")
    a("s_waitcnt lgkmcnt(0)")
    a(f"v_max3_f32 v{vM}, v{vF}, v{vF+1}, v{vF+2}")
    for i in range(3, 15, 2):
        a(f"v_max3_f32 v{vM}, v{vM}, v{vF+i}, v{vF+i+1}")
    a(f"v_max_f32 v{vM}, v{vM}, v{vF+15}")
    a(f"""
    s_mov_b32 s{sT0}, {f2u(cexp):#x}
    v_mul_f32 v{vM}, s{sT0}, v{vM}          ; M' = c*M
    v_sub_f32 v{vNM}, 0, v{vM}
    """)
    for i in range(32):
        a(f"v_fma_f32 v{vS+i}, v{vS+i}, s{sT0}, v{vNM}")
    for i in range(32):
        a(f"v_exp_f32 v{vS+i}, v{vS+i}")
    for i in range(16):
        a(f"v_cvt_pk_bf16_f32 v{vP+i}, v{vS+2*i}, v{vS+2*i+1}")
    for ks in range(4):
        u0, u1 = 2 * ks, 2 * ks + 1
        vm.wait(f"V{u1}")
        def rd(dt):
            d = vF + 4 * dt
            a(f"ds_read_b64_tr_b16 v[{d}:{d+1}], v{vVrd+dt} offset:{slotV(u0)}")
            a(f"ds_read_b64_tr_b16 v[{d+2}:{d+3}], v{vVrd+dt} offset:{slotV(u1)}")
        for dt in range(4): rd(dt)
        cL = "0" if ks == 0 else f"v[{vL}:{vL+3}]"
        a(f"v_mfma_f32_16x16x32_bf16 v[{vL}:{vL+3}], v[{vOnes}:{vOnes+3}], v[{vP+4*ks}:{vP+4*ks+3}], {cL}")
        for dt in range(8):
            if dt + 4 < 8:
                a("s_waitcnt lgkmcnt(6)")
            else:
                a(f"s_waitcnt lgkmcnt({2*(7-dt)})")
            d = vF + 4 * dt
            c = "0" if ks == 0 else f"v[{vOa+4*dt}:{vOa+4*dt+3}]"
            a(f"v_mfma_f32_16x16x32_bf16 v[{vOa+4*dt}:{vOa+4*dt+3}], v[{d}:{d+3}], v[{vP+4*ks}:{vP+4*ks+3}], {c}")
            if dt + 4 < 8: rd(dt + 4)
    stamp("PV")
    a(f"""
    s_add_u32 s{sT0}, s{sLds}, {SPARE}
    v_mul_u32_u24 v{vA}, 528, v{vN}
    v_lshl_add_u32 v{vA}, v{vG}, 4, v{vA}
    v_add_u32 v{vA}, s{sT0}, v{vA}
    v_mul_u32_u24 v{vB}, 528, v{vN}
    v_add_u32 v{vB}, s{sT0}, v{vB}
    s_mov_b32 exec_lo, 0x000f000f
    s_mov_b32 exec_hi, 0x000f000f
    """)
    for dt in range(8):
        a(f"ds_write_b128 v{vA}, v[{vOa+4*dt}:{vOa+4*dt+3}] offset:{64*dt}")
    a(f"""
    s_mov_b32 exec_lo, 0x0000000f
    s_mov_b32 exec_hi, 0
    ds_write_b32 v{vB}, v{vL} offset:512
    s_mov_b64 exec, -1
    s_mul_i32 s{sT0}, s{sWave}, 528
    s_add_u32 s{sT0}, s{sT0}, {SPARE}
    v_lshlrev_b32 v{vT}, 4, v{vLane}
    v_add_u32 v{vA}, s{sT0}, v{vT}
    v_add_u32 v{vB}, {2*WREG}, v{vA}
    s_lshl_b32 s{sT0}, s{sPidx}, 11
    s_lshl_b32 s{sT1}, s{sWave}, 9
    s_add_u32 s{sT0}, s{sT0}, s{sT1}
    s_add_u32 s{sT0}, s{sT0}, {WS_AP}
    v_add_u32 v{vC}, s{sT0}, v{vT}
    s_lshl_b32 s{sT0}, s{sPidx}, 2
    s_add_u32 s{sT0}, s{sT0}, s{sWave}
    s_lshl_b32 s{sT0}, s{sT0}, 4
    s_add_u32 s{sT0}, s{sT0}, {WS_ML}
    v_mov_b32 v{vD}, s{sT0}
    v_cmp_eq_u32 vcc, 32, v{vLane}
    v_cndmask_b32 v{vC}, v{vC}, v{vD}, vcc
    v_readlane_b32 s{sMp}, v{vM}, s{sWave}
    s_waitcnt lgkmcnt(0)
    s_barrier   ; B3
    s_mov_b32 exec_lo, -1
    s_mov_b32 exec_hi, 1
    ds_read_b128 v[{vF}:{vF+3}], v{vA}
    ds_read_b128 v[{vF+4}:{vF+7}], v{vA} offset:{WREG}
    ds_read_b128 v[{vF+8}:{vF+11}], v{vB}
    ds_read_b128 v[{vF+12}:{vF+15}], v{vB} offset:{WREG}
    s_waitcnt lgkmcnt(2)
    """)
    for k in range(4): a(f"v_add_f32 v{vF+k}, v{vF+k}, v{vF+4+k}")
    a("s_waitcnt lgkmcnt(0)")
    for k in range(4): a(f"v_add_f32 v{vF+8+k}, v{vF+8+k}, v{vF+12+k}")
    for k in range(4): a(f"v_add_f32 v{vF+k}, v{vF+k}, v{vF+8+k}")
    a(f"v_mov_b32 v{vT}, v{vF}")
    for k in range(4): a(f"v_bfi_b32 v{vF+k}, s{sMask}, v{vTag}, v{vF+k}")
    a(f"""
    s_mov_b32 exec_lo, 0
    s_mov_b32 exec_hi, 1
    v_mov_b32 v{vF}, s{sMp}
    v_mov_b32 v{vF+1}, v{vT}
    v_mov_b32 v{vF+2}, s{sEn}
    v_mov_b32 v{vF+3}, s{sEnn}
    s_mov_b32 exec_lo, -1
    buffer_store_dwordx4 v[{vF}:{vF+3}], v{vC}, {srd(rWS)}, 0 offen sc1
    s_mov_b64 exec, -1
    """)
    vm.issue("pub1")
    stamp("pub1")
    a(f"""
    s_lshr_b32 s{sT0}, s{sWave}, 1          ; b
    s_lshl_b32 s{sT1}, s{sHkv}, 1
    s_add_u32 s{sT1}, s{sT1}, s{sT0}
    s_lshl_b32 s{sT1}, s{sT1}, 4
    s_lshr_b32 s{sT2}, s{sIdx}, 3
    v_lshrrev_b32 v{vT}, 2, v{vLane}
    v_add_u32 v{vT}, s{sT1}, v{vT}          ; pidx
    v_lshlrev_b32 v{vU}, 2, v{vT}
    v_add_u32 v{vU}, s{sT2}, v{vU}
    v_lshlrev_b32 v{vU}, 4, v{vU}
    v_add_u32 v{vB}, {WS_ML}, v{vU}
    s_lshl_b32 s{sT2}, s{sT2}, 9            ; hh*512
    s_lshr_b32 s{sT3}, s{sIdx}, 1
    s_and_b32 s{sT3}, s{sT3}, 3             ; dq
    s_lshl_b32 s{sT3}, s{sT3}, 7            ; 8*dq*16
    s_add_u32 s{sT2}, s{sT2}, s{sT3}
    s_and_b32 s{sT3}, s{sWave}, 1
    s_lshl_b32 s{sT3}, s{sT3}, 6            ; 4*half*16
    s_add_u32 s{sT2}, s{sT2}, s{sT3}
    s_add_u32 s{sT2}, s{sT2}, {WS_AP}
    v_lshlrev_b32 v{vT}, 11, v{vT}
    v_and_b32 v{vU}, 3, v{vLane}
    v_lshl_add_u32 v{vT}, v{vU}, 4, v{vT}
    v_add_u32 v{vA}, s{sT2}, v{vT}
    """)
    vm.wait("WD")
    for nt in range(4):
        for hf in range(2):
            d = vA2 + 4 * nt + 2 * hf
            a(f"ds_read_b64_tr_b16 v[{d}:{d+1}], v{vTrd+nt} offset:{7*4096 + 4*hf*128}")
    for nt in range(4):
        a(f"ds_read_b64_tr_b16 v[{vAd+2*nt}:{vAd+2*nt+1}], v{vWrd+nt}")
    vSel = V("Sel", 4); vHb = V("Hb", 8, 2); vOb = V("Ob", 16, 4); vGb = V("Gb")
    a(f"""
    v_lshrrev_b32 v{vT}, 1, v{vN}
    v_and_b32 v{vU}, 1, v{vN}
    v_lshlrev_b32 v{vW}, 5, v{vU}
    v_lshl_add_u32 v{vW}, v{vG}, 3, v{vW}
    v_add_u32 v{vW}, {L_H}, v{vW}            ; h address
    v_lshlrev_b32 v{vU}, 6, v{vU}
    v_lshl_add_u32 v{vU}, v{vG}, 4, v{vU}
    v_add_u32 v{vU}, {L_O2}, v{vU}           ; o address
    v_mov_b32 v{vD}, {L_ZERO}
    """)
    for t in range(4):
        a(f"v_cmp_eq_u32 vcc, {t}, v{vT}")
        a(f"v_cndmask_b32 v{vSel+t}, v{vD}, v{vU}, vcc")
        a(f"v_cndmask_b32 v{vC}, v{vD}, v{vW}, vcc")
        a(f"ds_read_b64 v[{vHb+2*t}:{vHb+2*t+1}], v{vC}")
    a(f"""
    s_lshr_b32 s{sT0}, s{sWave}, 1
    s_lshl_b32 s{sT0}, s{sT0}, 2
    s_add_u32 s{sT0}, s{sT0}, {L_G}
    v_mov_b32 v{vT}, s{sT0}
    ds_read_b32 v{vGb}, v{vT}
    s_waitcnt lgkmcnt(0)
    """)
    for t in range(4):
        c = "0" if t == 0 else f"v[{vAcc}:{vAcc+3}]"
        a(f"v_mfma_f32_16x16x16_bf16 v[{vAcc}:{vAcc+3}], v[{vAd+2*t}:{vAd+2*t+1}], v[{vHb+2*t}:{vHb+2*t+1}], {c}")
    vO = vF; vML = vF + 4; y = vF + 8; y2 = vF + 9; z = vF + 10
    a(f"s_mov_b32 s{sSpin}, {cfg.spin}")
    a("L_h1:")
    a(f"""
    buffer_load_dwordx4 v[{vO}:{vO+3}], v{vA}, {srd(rWS)}, 0 offen sc1
    buffer_load_dwordx4 v[{vML}:{vML+3}], v{vB}, {srd(rWS)}, 0 offen sc1
    s_waitcnt vmcnt(0)
    v_bitop3_b32 v{y}, v{vO}, v{vO+1}, v{vTag} bitop3:0x7e
    v_bitop3_b32 v{y2}, v{vO+2}, v{vO+3}, v{vTag} bitop3:0x7e
    v_or_b32 v{y}, v{y}, v{y2}
    v_and_b32 v{y}, s{sMask}, v{y}
    v_xor_b32 v{y2}, s{sEn}, v{vML+2}
    v_xor_b32 v{z}, s{sEnn}, v{vML+3}
    v_or3_b32 v{y}, v{y}, v{y2}, v{z}
    v_cmp_ne_u32 vcc, 0, v{y}
    s_cbranch_vccz L_h1_done
    s_sub_u32 s{sSpin}, s{sSpin}, 1
    s_cmp_lg_u32 s{sSpin}, 0
    s_cbranch_scc1 L_h1
    """)
    a("L_h1_done:")
    vm.q = []
    stamp("h1")
    m = vF + 8; t1 = vF + 9; f = vF + 10; lf = vF + 11; t2 = vF + 12
    a(f"""
    v_max_f32_dpp v{m}, v{vML}, v{vML} row_ror:4 row_mask:0xf bank_mask:0xf
    v_not_b32 v{t2}, s{sMask}
    v_max_f32_dpp v{m}, v{m}, v{m} row_ror:8 row_mask:0xf bank_mask:0xf
    v_and_b32 v{vO}, v{vO}, v{t2}
    v_and_b32 v{vO+1}, v{vO+1}, v{t2}
    v_mov_b32 v{t1}, v{m}
    v_and_b32 v{vO+2}, v{vO+2}, v{t2}
    v_and_b32 v{vO+3}, v{vO+3}, v{t2}
    v_permlane32_swap_b32 v{m}, v{t1}
    v_max_f32 v{m}, v{m}, v{t1}
    v_mov_b32 v{t1}, v{m}
    v_permlane16_swap_b32 v{m}, v{t1}
    v_max_f32 v{m}, v{m}, v{t1}
    v_sub_f32 v{f}, v{vML}, v{m}
    v_exp_f32 v{f}, v{f}
    v_mul_f32 v{lf}, v{f}, v{vML+1}
    v_mul_f32 v{vO}, v{f}, v{vO}
    v_mul_f32 v{vO+1}, v{f}, v{vO+1}
    v_mul_f32 v{vO+2}, v{f}, v{vO+2}
    v_mul_f32 v{vO+3}, v{f}, v{vO+3}
    v_mov_b32 v{t1}, v{lf}
    v_permlane32_swap_b32 v{vO}, v{vO+1}
    v_permlane32_swap_b32 v{vO+2}, v{vO+3}
    v_permlane32_swap_b32 v{lf}, v{t1}
    v_add_f32 v{vO}, v{vO}, v{vO+1}
    v_add_f32 v{vO+2}, v{vO+2}, v{vO+3}
    v_add_f32 v{lf}, v{lf}, v{t1}
    v_mov_b32 v{t1}, v{lf}
    v_permlane16_swap_b32 v{vO}, v{vO+2}
    v_permlane16_swap_b32 v{lf}, v{t1}
    v_add_f32 v{vO}, v{vO}, v{vO+2}
    v_add_f32 v{lf}, v{lf}, v{t1}
    v_add_f32_dpp v{vO}, v{vO}, v{vO} row_ror:4 row_mask:0xf bank_mask:0xf
    v_add_f32_dpp v{lf}, v{lf}, v{lf} row_ror:4 row_mask:0xf bank_mask:0xf
    v_add_f32_dpp v{vO}, v{vO}, v{vO} row_ror:8 row_mask:0xf bank_mask:0xf
    v_add_f32_dpp v{lf}, v{lf}, v{lf} row_ror:8 row_mask:0xf bank_mask:0xf
    v_rcp_f32 v{lf}, v{lf}
    v_mul_f32 v{vO}, v{vO}, v{vGb}
    v_mul_f32 v{vO}, v{vO}, v{lf}
    v_cvt_pk_bf16_f32 v{vO}, v{vO}, v{vO}
    v_and_b32 v{t1}, 1, v{vG}
    v_lshlrev_b32 v{t1}, 1, v{t1}
    v_lshrrev_b32 v{t2}, 1, v{vG}
    v_or_b32 v{t1}, v{t1}, v{t2}
    v_and_b32 v{t2}, 3, v{vLane}
    v_lshl_add_u32 v{t1}, v{t2}, 2, v{t1}
    v_lshlrev_b32 v{t1}, 1, v{t1}
    s_lshr_b32 s{sT0}, s{sWave}, 1
    s_lshl_b32 s{sT0}, s{sT0}, 6
    s_and_b32 s{sT1}, s{sWave}, 1
    s_lshl_b32 s{sT1}, s{sT1}, 5
    s_add_u32 s{sT0}, s{sT0}, s{sT1}
    s_add_u32 s{sT0}, s{sT0}, {L_O2}
    v_add_u32 v{t1}, s{sT0}, v{t1}
    s_mov_b32 exec_lo, 0x000f000f
    s_mov_b32 exec_hi, 0x000f000f
    ds_write_b16 v{t1}, v{vO}
    s_mov_b64 exec, -1
    s_lshl_b32 s{sT0}, s{sR}, 1
    s_add_u32 s{sT0}, s{sT0}, s{sC}
    s_lshl_b32 s{sT0}, s{sT0}, 11
    s_lshl_b32 s{sT1}, s{sWave}, 9
    s_add_u32 s{sT0}, s{sT0}, s{sT1}
    s_add_u32 s{sT0}, s{sT0}, {WS_OP}
    v_lshlrev_b32 v{vC}, 7, v{vG}
    v_lshl_add_u32 v{vC}, v{vN}, 4, v{vC}
    v_add_u32 v{vC}, s{sT0}, v{vC}
    s_waitcnt lgkmcnt(0)
    s_barrier   ; B4
    """)
    for t in range(4):
        a(f"ds_read_b128 v[{vOb+4*t}:{vOb+4*t+3}], v{vSel+t}")
    for t in range(4):
        a(f"s_waitcnt lgkmcnt({3-t})")
        a(f"v_mfma_f32_16x16x32_bf16 v[{vAcc}:{vAcc+3}], v[{vA2+4*t}:{vA2+4*t+3}], v[{vOb+4*t}:{vOb+4*t+3}], v[{vAcc}:{vAcc+3}]")
    for k in range(4): a(f"v_bfi_b32 v{vAcc+k}, s{sMask}, v{vTag}, v{vAcc+k}")
    a(f"""
    s_mov_b32 exec_lo, 0x00ff00ff
    s_mov_b32 exec_hi, 0x00ff00ff
    buffer_store_dwordx4 v[{vAcc}:{vAcc+3}], v{vC}, {srd(rWS)}, 0 offen sc1
    s_mov_b64 exec, -1
    """)
    stamp("pub2")
    a("s_cmp_ge_u32 s2, 64")
    a("s_cbranch_scc1 L_fin_stamps" if cfg.stamps else "s_cbranch_scc1 L_end")
    g0 = vF; g1 = vF + 4; y = vF + 8; y2 = vF + 9; t1 = vF + 10; t2 = vF + 11
    a(f"""
    s_lshr_b32 s{sT0}, s2, 5
    s_lshl_b32 s{sT0}, s{sT0}, 11
    s_lshr_b32 s{sT1}, s2, 3
    s_and_b32 s{sT1}, s{sT1}, 3
    s_lshl_b32 s{sT1}, s{sT1}, 9
    s_add_u32 s{sT0}, s{sT0}, s{sT1}
    s_lshr_b32 s{sT1}, s2, 1
    s_and_b32 s{sT1}, s{sT1}, 3
    s_lshl_b32 s{sT1}, s{sT1}, 7
    s_add_u32 s{sT0}, s{sT0}, s{sT1}
    s_and_b32 s{sT1}, s2, 1
    s_lshl_b32 s{sT1}, s{sT1}, 6
    s_add_u32 s{sT0}, s{sT0}, s{sT1}
    s_add_u32 s{sT0}, s{sT0}, {WS_OP}
    v_lshrrev_b32 v{vT}, 2, v0
    v_lshlrev_b32 v{vT}, 12, v{vT}
    v_and_b32 v{vU}, 3, v0
    v_lshl_add_u32 v{vT}, v{vU}, 4, v{vT}
    v_add_u32 v{vA}, s{sT0}, v{vT}
    s_mov_b32 s{sT3}, 262144
    v_not_b32 v{vD}, s{sMask}
    s_mov_b32 s{sSpin}, {cfg.spin}
    """)
    a("L_h2:")
    a(f"""
    buffer_load_dwordx4 v[{g0}:{g0+3}], v{vA}, {srd(rWS)}, 0 offen sc1
    buffer_load_dwordx4 v[{g1}:{g1+3}], v{vA}, {srd(rWS)}, s{sT3} offen sc1
    s_waitcnt vmcnt(0)
    v_bitop3_b32 v{y}, v{g0}, v{g0+1}, v{vTag} bitop3:0x7e
    v_bitop3_b32 v{y2}, v{g0+2}, v{g0+3}, v{vTag} bitop3:0x7e
    v_bitop3_b32 v{t1}, v{g1}, v{g1+1}, v{vTag} bitop3:0x7e
    v_bitop3_b32 v{t2}, v{g1+2}, v{g1+3}, v{vTag} bitop3:0x7e
    v_or3_b32 v{y}, v{y}, v{y2}, v{t1}
    v_or_b32 v{y}, v{y}, v{t2}
    v_and_b32 v{y}, s{sMask}, v{y}
    v_cmp_ne_u32 vcc, 0, v{y}
    s_cbranch_vccz L_h2_done
    s_sub_u32 s{sSpin}, s{sSpin}, 1
    s_cmp_lg_u32 s{sSpin}, 0
    s_cbranch_scc1 L_h2
    """)
    a("L_h2_done:")
    stamp("h2")
    for k in range(4):
        a(f"v_and_b32 v{g0+k}, v{g0+k}, v{vD}")
        a(f"v_and_b32 v{g1+k}, v{g1+k}, v{vD}")
    for k in range(4): a(f"v_add_f32 v{g0+k}, v{g0+k}, v{g1+k}")
    a(f"""
    v_permlane32_swap_b32 v{g0}, v{g0+1}
    v_permlane32_swap_b32 v{g0+2}, v{g0+3}
    v_add_f32 v{g0}, v{g0}, v{g0+1}
    v_add_f32 v{g0+2}, v{g0+2}, v{g0+3}
    v_permlane16_swap_b32 v{g0}, v{g0+2}
    v_add_f32 v{g0}, v{g0}, v{g0+2}
    v_add_f32_dpp v{g0}, v{g0}, v{g0} row_ror:4 row_mask:0xf bank_mask:0xf
    v_add_f32_dpp v{g0}, v{g0}, v{g0} row_ror:8 row_mask:0xf bank_mask:0xf
    v_and_b32 v{t1}, 1, v{vG}
    v_lshlrev_b32 v{t1}, 1, v{t1}
    v_lshrrev_b32 v{t2}, 1, v{vG}
    v_or_b32 v{t1}, v{t1}, v{t2}
    v_and_b32 v{t2}, 3, v{vLane}
    v_lshl_add_u32 v{t1}, v{t2}, 2, v{t1}
    v_lshlrev_b32 v{t1}, 2, v{t1}
    s_lshl_b32 s{sT0}, s{sWave}, 6
    s_add_u32 s{sT0}, s{sT0}, {L_FIN}
    v_add_u32 v{t1}, s{sT0}, v{t1}
    s_mov_b32 exec_lo, 0x000f000f
    s_mov_b32 exec_hi, 0x000f000f
    ds_write_b32 v{t1}, v{g0}
    s_mov_b64 exec, -1
    v_lshlrev_b32 v{t2}, 4, v{t2}
    v_add_u32 v{t2}, {L_FIN}, v{t2}
    s_lshr_b32 s{sT0}, s2, 5
    s_lshl_b32 s{sT0}, s{sT0}, 9
    s_lshr_b32 s{sT1}, s2, 3
    s_and_b32 s{sT1}, s{sT1}, 3
    s_lshl_b32 s{sT1}, s{sT1}, 7
    s_add_u32 s{sT0}, s{sT0}, s{sT1}
    s_and_b32 s{sT1}, s2, 1
    s_lshl_b32 s{sT1}, s{sT1}, 6
    s_add_u32 s{sT0}, s{sT0}, s{sT1}
    s_lshr_b32 s{sT1}, s2, 1
    s_and_b32 s{sT1}, s{sT1}, 3
    s_lshl_b32 s{sT1}, s{sT1}, 3
    s_add_u32 s{sT0}, s{sT0}, s{sT1}
    v_and_b32 v{vT}, 1, v{vLane}
    v_lshlrev_b32 v{vT}, 10, v{vT}
    v_bfe_u32 v{vU}, v{vLane}, 1, 1
    v_lshl_add_u32 v{vT}, v{vU}, 5, v{vT}
    v_add_u32 v{vT}, s{sT0}, v{vT}
    """)
    mksrd(rO, P_OUT, None, 2048)
    a(f"""
    s_waitcnt lgkmcnt(0)
    s_barrier   ; B5
    s_cmp_lg_u32 s{sWave}, 0
    s_cbranch_scc1 {"L_fin_stamps" if cfg.stamps else "L_end"}
    s_mov_b32 exec_lo, 15
    s_mov_b32 exec_hi, 0
    ds_read_b128 v[{vF}:{vF+3}], v{t2}
    ds_read_b128 v[{vF+4}:{vF+7}], v{t2} offset:64
    ds_read_b128 v[{vF+12}:{vF+15}], v{t2} offset:128
    ds_read_b128 v[{vF+16}:{vF+19}], v{t2} offset:192
    s_waitcnt lgkmcnt(0)
    """)
    for k in range(4):
        a(f"v_add_f32 v{vF+k}, v{vF+k}, v{vF+4+k}")
        a(f"v_add_f32 v{vF+12+k}, v{vF+12+k}, v{vF+16+k}")
    for k in range(4): a(f"v_add_f32 v{vF+k}, v{vF+k}, v{vF+12+k}")
    a(f"""
    v_cvt_pk_bf16_f32 v{vF}, v{vF}, v{vF+1}
    v_cvt_pk_bf16_f32 v{vF+1}, v{vF+2}, v{vF+3}
    buffer_store_dwordx2 v[{vF}:{vF+1}], v{vT}, {srd(rO)}, 0 offen
    s_cmp_lg_u32 s2, 0
    s_cbranch_scc1 {"L_fin_stamps0" if cfg.stamps else "L_end"}
    s_mov_b32 exec_lo, 1
    v_mov_b32 v{vT}, {WS_EPOCH}
    v_mov_b32 v{vU}, s{sEn}
    buffer_store_dword v{vU}, v{vT}, {srd(rWS)}, 0 offen sc1
    """)
    def dump_stamps(vA_, vD_, helper=False):
        a("s_waitcnt vmcnt(0)")
        a(f"s_memrealtime s[{sTl}:{sTl+1}]")
        a("s_waitcnt lgkmcnt(0)")
        if cfg.stamps == 2:
            mksrd(rO, P_DBG, None, 256)
            a("s_mov_b32 exec_lo, 1\ns_mov_b32 exec_hi, 0")
            a(f"s_not_b32 s{sSpin}, s{streg(0)}")
            a(f"v_mov_b32 v{vA_}, 0")
            a(f"v_mov_b32 v{vD_}, s{sSpin}")
            a(f"buffer_atomic_umax v{vD_}, v{vA_}, {srd(rO)}, 0 offen")
            idx = [(i, i) for i in range(1, 10)] + [("l", 10)] if not helper else [(1, 11), (2, 12), (3, 13), (4, 14)]
            for (i, w) in idx:
                a(f"v_mov_b32 v{vD_+1}, s{sTl if i == 'l' else streg(i)}")
                a(f"buffer_atomic_umax v{vD_+1}, v{vA_}, {srd(rO)}, 0 offen offset:{4*w}")
                a("s_nop 1")
            if not helper:
                a(f"v_mov_b32 v{vD_+1}, s{streg(0)}")
                a(f"buffer_atomic_umax v{vD_+1}, v{vA_}, {srd(rO)}, 0 offen offset:{4*15}")
            return
        a(f"s_lshl_b32 s{sSpin}, s2, 3\ns_add_u32 s{sSpin}, s{sSpin}, s{sWave}\ns_lshl_b32 s{sSpin}, s{sSpin}, 6\ns_add_u32 s{sSpin}, s{sSpin}, {WS_STAMP}")
        a(f"v_mov_b32 v{vA_}, s{sSpin}")
        a("s_mov_b32 exec_lo, 1\ns_mov_b32 exec_hi, 0")
        for i in range(11): a(f"v_mov_b32 v{vD_+i}, s{streg(i)}")
        a(f"v_mov_b32 v{vD_+11}, s{sTl}")
        for i in range(3):
            a(f"buffer_store_dwordx4 v[{vD_+4*i}:{vD_+4*i+3}], v{vA_}, {srd(rWS)}, 0 offen offset:{16*i}")
    if cfg.stamps:
        a("L_fin_stamps0:")
        a("s_mov_b64 exec, -1")
        a("L_fin_stamps:")
        dump_stamps(vA, vF)
    a("s_endpgm")
    nv_stream = V.n

    H = Regs(8, 256)
    a("L_helper:")
    nstamp[0] = 1
    hx0 = H("x0", 4, 4); hx1 = H("x1", 4, 4); hgw = H("gw", 4, 4)
    hA = H("A"); hB = H("B"); hC = H("C"); hD = H("D"); hz0 = H("z0"); hz1 = H("z1")
    ht = [H(f"t{i}") for i in range(8)]
    hq = H("q", 16, 4)
    mksrd(rO, P_GW, None, 1024)
    a(f"""
    v_lshlrev_b32 v{hA}, 4, v{vLane}
    buffer_load_dwordx4 v[{hx0}:{hx0+3}], v{hA}, {srd(rX)}, 0 offen
    buffer_load_dwordx4 v[{hx1}:{hx1+3}], v{hA}, {srd(rX)}, 0 offen offset:1024
    buffer_load_dwordx4 v[{hgw}:{hgw+3}], v{hA}, {srd(rO)}, 0 offen
    v_mov_b32 v{ht[0]}, 0
    v_mov_b32 v{hB}, {L_ZERO}
    ds_write_b32 v{hB}, v{ht[0]}
    ds_write_b32 v{hB}, v{ht[0]} offset:4
    ds_write_b32 v{hB}, v{ht[0]} offset:8
    ds_write_b32 v{hB}, v{ht[0]} offset:12
    s_waitcnt lgkmcnt(0)
    s_add_u32 s{sEn}, s{sEp}, 1
    s_not_b32 s{sEnn}, s{sEn}
    s_and_b32 s{sT0}, s{sEn}, s{sMask}
    v_mov_b32 v{vTag}, s{sT0}
    v_mov_b32 v{hz0}, 0
    v_mov_b32 v{hz1}, 0
    s_waitcnt vmcnt(0)
    """)
    for k in range(4):
        for (xr, z) in ((hx0, hz0), (hx1, hz1)):
            a(f"""
            v_lshlrev_b32 v{ht[0]}, 16, v{xr+k}
            v_and_b32 v{ht[1]}, 0xffff0000, v{xr+k}
            v_lshlrev_b32 v{ht[2]}, 16, v{hgw+k}
            v_and_b32 v{ht[3]}, 0xffff0000, v{hgw+k}
            v_mul_f32 v{ht[0]}, v{ht[0]}, v{ht[2]}
            v_mul_f32 v{ht[1]}, v{ht[1]}, v{ht[3]}
            v_cvt_pk_bf16_f32 v{ht[0]}, v{ht[0]}, v{ht[1]}
            v_and_b32 v{ht[1]}, 0xffff0000, v{ht[0]}
            v_lshlrev_b32 v{ht[0]}, 16, v{ht[0]}
            v_add_f32 v{z}, v{z}, v{ht[0]}
            v_add_f32 v{z}, v{z}, v{ht[1]}
            """)
    for z in (hz0, hz1):
        for n in (1, 2, 4, 8):
            a(f"v_add_f32_dpp v{z}, v{z}, v{z} row_ror:{n} row_mask:0xf bank_mask:0xf")
    for sw in ("16", "32"):
        for z in (hz0, hz1):
            a(f"v_mov_b32 v{ht[0]}, v{z}\nv_permlane{sw}_swap_b32 v{z}, v{ht[0]}\nv_add_f32 v{z}, v{z}, v{ht[0]}")
    a(f"""
    v_cvt_pk_bf16_f32 v{ht[0]}, v{hz0}, v{hz1}
    v_lshlrev_b32 v{hz0}, 16, v{ht[0]}
    v_and_b32 v{hz1}, 0xffff0000, v{ht[0]}
    s_mov_b32 s{sT0}, {f2u(-LOG2E):#x}
    v_mul_f32 v{hz0}, s{sT0}, v{hz0}
    v_mul_f32 v{hz1}, s{sT0}, v{hz1}
    v_exp_f32 v{hz0}, v{hz0}
    v_exp_f32 v{hz1}, v{hz1}
    v_add_f32 v{hz0}, 1.0, v{hz0}
    v_add_f32 v{hz1}, 1.0, v{hz1}
    v_rcp_f32 v{hz0}, v{hz0}
    v_rcp_f32 v{hz1}, v{hz1}
    v_cvt_pk_bf16_f32 v{ht[0]}, v{hz0}, v{hz1}
    v_lshlrev_b32 v{hz0}, 16, v{ht[0]}       ; g0
    v_and_b32 v{hz1}, 0xffff0000, v{ht[0]}   ; g1
    v_mov_b32 v{hB}, {L_G}
    ds_write_b32 v{hB}, v{hz0}
    ds_write_b32 v{hB}, v{hz1} offset:4
    v_sub_f32 v{hz0}, 1.0, v{hz0}
    v_sub_f32 v{hz1}, 1.0, v{hz1}
    v_cvt_pk_bf16_f32 v{ht[0]}, v{hz0}, v{hz1}
    v_lshlrev_b32 v{hz0}, 16, v{ht[0]}       ; 1-g0
    v_and_b32 v{hz1}, 0xffff0000, v{ht[0]}   ; 1-g1
    s_lshl_b32 s{sT0}, s{sKh}, 15
    s_add_u32 s{sT0}, s{sT0}, {WS_QP}
    s_lshl_b32 s{sT1}, s{sMat}, 1
    s_add_u32 s{sT1}, s{sT1}, s{sKh}
    s_mul_i32 s{sT1}, s{sT1}, 14336
    s_add_u32 s{sT1}, s{sT1}, {WS_FP}
    s_mov_b32 s{sT3}, 7168
    s_cmp_lt_u32 s2, 128
    s_cselect_b32 s{sT0}, s{sT0}, s{sT1}
    s_cselect_b32 s{sT1}, 16384, s{sT3}
    s_lshl_b32 s{sT2}, s{sCg}, 8
    s_add_u32 s{sT0}, s{sT0}, s{sT2}
    v_and_b32 v{ht[0]}, 1, v{vG}
    v_mul_lo_u32 v{hA}, v{ht[0]}, s{sT1}
    v_lshl_add_u32 v{hA}, v{vN}, 4, v{hA}
    v_add_u32 v{hA}, s{sT0}, v{hA}
    v_lshlrev_b32 v{hB}, 8, v{ht[0]}
    v_lshl_add_u32 v{hB}, v{vN}, 4, v{hB}
    v_add_u32 v{hB}, {L_P0}, v{hB}
    s_lshr_b32 s{sT0}, s{sIdx}, 4
    s_lshl_b32 s{sT0}, s{sT0}, 14
    s_lshl_b32 s{sT1}, s{sHkv}, 11
    s_add_u32 s{sT0}, s{sT0}, s{sT1}
    s_add_u32 s{sT0}, s{sT0}, {WS_QP}
    v_lshlrev_b32 v{ht[1]}, 4, v{vLane}
    v_add_u32 v{hC}, s{sT0}, v{ht[1]}
    s_waitcnt lgkmcnt(0)
    """)
    if cfg.stamps:
        for i in range(1, 11): a(f"s_mov_b32 s{streg(i)}, 0")
    a("s_barrier   ; B0")
    stamp("hB0")
    a("s_cmp_ge_u32 s2, 240")
    a("s_cbranch_scc1 L_h_nopub")
    for wv in range(4):
        a(f"ds_read_b128 v[{hq+4*wv}:{hq+4*wv+3}], v{hB} offset:{512*wv}")
    a("s_waitcnt lgkmcnt(0)")
    for k in range(4):
        a(f"v_add_f32 v{hq+k}, v{hq+k}, v{hq+4+k}")
        a(f"v_add_f32 v{hq+8+k}, v{hq+8+k}, v{hq+12+k}")
    for k in range(4): a(f"v_add_f32 v{hq+k}, v{hq+k}, v{hq+8+k}")
    for k in range(4): a(f"v_bfi_b32 v{hq+k}, s{sMask}, v{vTag}, v{hq+k}")
    a(f"""
    s_mov_b32 exec_hi, 0
    buffer_store_dwordx4 v[{hq}:{hq+3}], v{hA}, {srd(rWS)}, 0 offen sc1
    s_mov_b64 exec, -1
    """)
    a("L_h_nopub:")
    stamp("hpub")
    a(f"s_mov_b32 s{sSpin}, {cfg.spin}")
    a(f"s_mov_b32 s{sT3}, 32768")
    a(f"v_not_b32 v{hD}, s{sMask}")
    a("L_hq:")
    a(f"""
    buffer_load_dwordx4 v[{hq}:{hq+3}], v{hC}, {srd(rWS)}, 0 offen sc1
    buffer_load_dwordx4 v[{hq+4}:{hq+7}], v{hC}, {srd(rWS)}, 0 offen offset:1024 sc1
    buffer_load_dwordx4 v[{hq+8}:{hq+11}], v{hC}, {srd(rWS)}, s{sT3} offen sc1
    buffer_load_dwordx4 v[{hq+12}:{hq+15}], v{hC}, {srd(rWS)}, s{sT3} offen offset:1024 sc1
    s_waitcnt vmcnt(0)
    """)
    for i in range(8):
        a(f"v_bitop3_b32 v{ht[i]}, v{hq+2*i}, v{hq+2*i+1}, v{vTag} bitop3:0x7e")
    a(f"""
    v_or3_b32 v{ht[0]}, v{ht[0]}, v{ht[1]}, v{ht[2]}
    v_or3_b32 v{ht[3]}, v{ht[3]}, v{ht[4]}, v{ht[5]}
    v_or3_b32 v{ht[0]}, v{ht[0]}, v{ht[6]}, v{ht[7]}
    v_or_b32 v{ht[0]}, v{ht[0]}, v{ht[3]}
    v_and_b32 v{ht[0]}, s{sMask}, v{ht[0]}
    v_cmp_ne_u32 vcc, 0, v{ht[0]}
    s_cbranch_vccz L_hq_done
    """)
    if cfg.sleep: a(f"s_sleep {cfg.sleep}")
    a(f"""
    s_sub_u32 s{sSpin}, s{sSpin}, 1
    s_cmp_lg_u32 s{sSpin}, 0
    s_cbranch_scc1 L_hq
    """)
    a("L_hq_done:")
    stamp("hq")
    for i in range(16): a(f"v_and_b32 v{hq+i}, v{hq+i}, v{hD}")
    for i in range(8): a(f"v_add_f32 v{hq+i}, v{hq+i}, v{hq+8+i}")
    for i in range(4): a(f"v_cvt_pk_bf16_f32 v{hq+i}, v{hq+2*i}, v{hq+2*i+1}")
    a(f"""
    v_lshlrev_b32 v{hA}, 3, v{vLane}
    v_add_u32 v{hA}, {L_Q}, v{hA}
    ds_write_b64 v{hA}, v[{hq}:{hq+1}]
    ds_write_b64 v{hA}, v[{hq+2}:{hq+3}] offset:512
    v_and_b32 v{ht[0]}, 3, v{vLane}
    v_bfe_u32 v{ht[1]}, v{vLane}, 2, 1
    v_bfe_u32 v{ht[2]}, v{vLane}, 3, 1
    v_lshlrev_b32 v{hC}, 4, v{ht[0]}
    v_mul_u32_u24 v{ht[3]}, 7168, v{ht[1]}
    v_mul_u32_u24 v{ht[4]}, 14336, v{ht[2]}
    v_add3_u32 v{hC}, v{hC}, v{ht[3]}, v{ht[4]}
    s_lshl_b32 s{sT0}, s{sW0}, 2
    s_add_u32 s{sT0}, s{sT0}, {WS_FP}
    v_add_u32 v{hC}, s{sT0}, v{hC}
    s_mov_b32 s{sT3}, 28672
    s_waitcnt lgkmcnt(0)
    s_barrier   ; B1
    s_mov_b32 s{sSpin}, {cfg.spin}
    """)
    a("L_hf:")
    a(f"""
    buffer_load_dwordx4 v[{hq}:{hq+3}], v{hC}, {srd(rWS)}, 0 offen sc1
    buffer_load_dwordx4 v[{hq+4}:{hq+7}], v{hC}, {srd(rWS)}, s{sT3} offen sc1
    s_waitcnt vmcnt(0)
    """)
    for i in range(4):
        a(f"v_bitop3_b32 v{ht[3+i]}, v{hq+2*i}, v{hq+2*i+1}, v{vTag} bitop3:0x7e")
    a(f"""
    v_or3_b32 v{ht[3]}, v{ht[3]}, v{ht[4]}, v{ht[5]}
    v_or_b32 v{ht[3]}, v{ht[3]}, v{ht[6]}
    v_and_b32 v{ht[3]}, s{sMask}, v{ht[3]}
    v_cmp_ne_u32 vcc, 0, v{ht[3]}
    s_cbranch_vccz L_hf_done
    """)
    if cfg.sleep: a(f"s_sleep {cfg.sleep}")
    a(f"""
    s_sub_u32 s{sSpin}, s{sSpin}, 1
    s_cmp_lg_u32 s{sSpin}, 0
    s_cbranch_scc1 L_hf
    """)
    a("L_hf_done:")
    stamp("hf")
    for i in range(8): a(f"v_and_b32 v{hq+i}, v{hq+i}, v{hD}")
    for i in range(8): a(f"v_add_f32_dpp v{hq+i}, v{hq+i}, v{hq+i} row_ror:8 row_mask:0xf bank_mask:0xf")
    a(f"v_cmp_eq_u32 vcc, 1, v{ht[1]}")
    a(f"v_cndmask_b32 v{hz0}, v{hz0}, v{hz1}, vcc")
    a(f"s_mov_b32 s{sT0}, {f2u(-LOG2E):#x}")
    for k in range(4):
        g = hq + k; u = hq + 4 + k; e = hq + 8 + k
        a(f"v_mul_f32 v{e}, s{sT0}, v{g}")
    for k in range(4): a(f"v_exp_f32 v{hq+8+k}, v{hq+8+k}")
    for k in range(4): a(f"v_add_f32 v{hq+8+k}, 1.0, v{hq+8+k}")
    for k in range(4): a(f"v_rcp_f32 v{hq+8+k}, v{hq+8+k}")
    for k in range(4): a(f"v_mul_f32 v{hq+k}, v{hq+k}, v{hq+8+k}")
    for k in range(4): a(f"v_mul_f32 v{hq+k}, v{hq+k}, v{hq+4+k}")
    for k in range(4): a(f"v_mul_f32 v{hq+k}, v{hq+k}, v{hz0}")
    a(f"""
    s_and_b32 s{sT0}, s{sR}, 1
    s_cmp_eq_u32 s{sT0}, 0
    s_cselect_b32 s{sT1}, 3, 4
    s_cselect_b32 s{sT2}, 4, 0
    v_cmp_eq_u32 vcc, s{sT1}, v{ht[0]}
    v_cndmask_b32 v{hq+2}, v{hq+2}, 0, vcc
    v_cndmask_b32 v{hq+3}, v{hq+3}, 0, vcc
    v_cmp_eq_u32 vcc, s{sT2}, v{ht[0]}
    v_cndmask_b32 v{hq}, v{hq}, 0, vcc
    v_cndmask_b32 v{hq+1}, v{hq+1}, 0, vcc
    v_cvt_pk_bf16_f32 v{hq}, v{hq}, v{hq+1}
    v_cvt_pk_bf16_f32 v{hq+1}, v{hq+2}, v{hq+3}
    v_lshlrev_b32 v{hA}, 5, v{ht[1]}
    v_lshl_add_u32 v{hA}, v{ht[0]}, 3, v{hA}
    v_add_u32 v{hA}, {L_H}, v{hA}
    ds_write_b64 v{hA}, v[{hq}:{hq+1}]
    s_waitcnt lgkmcnt(0)
    s_barrier   ; B2
    """)
    if cfg.stamps:
        dump_stamps(hA, hq, True)
    a("L_end:")
    a("s_endpgm")
    nv = max(nv_stream, H.n)
    a.names = names
    return a, nv, nsgpr

HEADER = """; Fused decode step: out = g*Attn(x) + (1-g)*FFN(x), one launch, 256 workgroups (one per CU), 5 waves each.
; @launch grid=(256,1,1) block=(320,1,1) lds=163840
.amdgcn_target "amdgcn-amd-amdhsa--gfx950"
.text
"""
def full(cfg):
    a, nv, ns = gen(cfg)
    nvr = (nv + 7) // 8 * 8
    kd = f"""
.section .rodata,"a"
.p2align 6
.amdhsa_kernel {KNAME}
  .amdhsa_next_free_vgpr {nvr}
  .amdhsa_next_free_sgpr {max(ns, 96)}
  .amdhsa_accum_offset {nvr}
  .amdhsa_group_segment_fixed_size 0
  .amdhsa_kernarg_size 104
  .amdhsa_user_sgpr_count 2
  .amdhsa_user_sgpr_kernarg_segment_ptr 1
  .amdhsa_system_sgpr_workgroup_id_x 1
  .amdhsa_float_denorm_mode_32 3
.end_amdhsa_kernel
"""
    return HEADER + a.text() + kd, nv, ns, a.nnops

if __name__ == "__main__":
    import argparse
    ap = argparse.ArgumentParser()
    ap.add_argument("-o", default="k.s")
    ap.add_argument("opts", nargs="*")
    args = ap.parse_args()
    kw = {}
    for o in args.opts:
        k, v = o.split("=")
        kw[k] = (v if k in ("kvpol", "wpol", "p2pos") else int(v))
    if kw.get("kvpol") == "def": kw["kvpol"] = ""
    if kw.get("wpol") == "def": kw["wpol"] = ""
    cfg = Cfg(**kw)
    txt, nv, ns, nn = full(cfg)
    open(args.o, "w").write(txt)
    print(f"wrote {args.o}: vgprs {nv} sgprs {ns} nops {nn} lines {txt.count(chr(10))}")
```

```python
import sys, math
from asmb import *

KNAME = "gated_mix__gqa_block_cached__swiglu_ffn__decode_kernel"

WS_EPOCH = 0
WS_QP = 0x1000
WS_FP = WS_QP + 65536
WS_AP = 0x20000
WS_ML = WS_AP + 0x80000
WS_OP = WS_ML + 0x4000
WS_STAMP = WS_OP + 0x80000
WS_SIZE = WS_STAMP + 0x40000

WREG = 36864
SPARE = 32768
MISC = 4 * WREG
L_WD = MISC
L_P0 = MISC + 0x2000
L_Q = L_P0 + 0x800
L_MX = L_Q + 0x400
L_H = L_MX + 0x100
L_ZERO = L_H + 0x40
L_O2 = L_ZERO + 0x40
L_G = L_O2 + 0x80
L_FIN = L_G + 0x100
LDS_BYTES = 163840
assert L_FIN + 256 <= LDS_BYTES

TAGMASK = 0x3FF
LOG2E = 1.4426950408889634
SCALE = 128 ** -0.5

def f2u(x):
    import struct
    return struct.unpack("<I", struct.pack("<f", x))[0]

class Cfg:
    kvpol = "nt"
    wpol = "nt"
    WK = 3
    WV = 99
    p2pos = "end"
    stamps = False
    mimic = False
    spin = 1 << 17
    sleep = 0
    def __init__(self, **kw):
        for k, v in kw.items():
            assert hasattr(self, k), k
            setattr(self, k, v)

def gen(cfg):
    a = Asm()
    S = Regs(30, 100)
    P_X, P_K, P_V, P_WQ, P_WO, P_WG, P_WU, P_WD, P_GW, P_OUT, P_DBG, P_WS = 4, 6, 8, 10, 12, 16, 18, 20, 22, 24, 26, 28
    sWave = 3
    sEp = S("ep"); sEn = S("en"); sEnn = S("enn"); sMask = S("mask")
    sHkv = S("hkv"); sIdx = S("idx"); sLds = S("lds"); sSo = S("so")
    sCg = S("cg"); sKh = S("kh"); sMat = S("mat"); sStride = S("stride")
    sT0 = S("t0"); sT1 = S("t1"); sT2 = S("t2"); sT3 = S("t3")
    sSpin = S("spin"); sPidx = S("pidx"); sR = S("r"); sC = S("c"); sW0 = S("w0"); sMp = S("mp")
    rK = S("rK", 4, 4); rV = S("rV", 4, 4); rT = S("rT", 4, 4); rWO = S("rWO", 4, 4); rWD = S("rWD", 4, 4)
    rWS = S("rWS", 4, 4); rX = S("rX", 4, 4); rO = S("rO", 4, 4)
    sSt0 = S("stamp0", 2, 2) if cfg.stamps else None
    sTl = S("stampl", 2, 2) if cfg.stamps else None
    def streg(i): return sSt0 if i == 0 else 4 + 2 * (i - 1)
    nsgpr = S.n
    def srd(r): return f"s[{r}:{r+3}]"
    nstamp = [0]; names = []
    def stamp(name):
        if not cfg.stamps: return
        i = nstamp[0]; assert i < 11
        a(f"s_memrealtime s[{streg(i)}:{streg(i)+1}]"); nstamp[0] += 1
        names.append(name)
    def mksrd(r, plo, off_s, nrec):
        if off_s is None:
            a(f"s_mov_b32 s{r}, s{plo}\ns_mov_b32 s{r+1}, s{plo+1}")
        else:
            a(f"s_add_u32 s{r}, s{plo}, {off_s}\ns_addc_u32 s{r+1}, s{plo+1}, 0")
        a(f"s_mov_b32 s{r+2}, {nrec}\ns_mov_b32 s{r+3}, 0x20000")

    a.raw(f".globl {KNAME}\n.p2align 8\n.type {KNAME},@function\n{KNAME}:")
    a("s_cmp_ge_u32 s2, 256")
    a("s_cbranch_scc1 L_end")
    if cfg.stamps: stamp("start")
    a("s_load_dwordx16 s[4:19], s[0:1], 0")
    a("s_load_dwordx8 s[20:27], s[0:1], 64")
    a("s_load_dwordx2 s[28:29], s[0:1], 96")
    V = Regs(1, 256)
    vLane = V("lane"); vN = V("n"); vG = V("g"); vT = V("t"); vU = V("u"); vW = V("w"); vTag = V("tag")
    a(f"""
    v_lshrrev_b32 v{vT}, 6, v0
    v_and_b32 v{vLane}, 63, v0
    v_readfirstlane_b32 s{sWave}, v{vT}
    v_and_b32 v{vN}, 15, v{vLane}
    v_lshrrev_b32 v{vG}, 4, v{vLane}
    s_and_b32 s{sHkv}, s2, 7
    s_lshr_b32 s{sIdx}, s2, 3
    s_mov_b32 s{sMask}, {TAGMASK}
    s_sub_u32 s{sT0}, s2, 128
    s_cmp_ge_u32 s{sT0}, 56
    s_cselect_b32 s{sMat}, 1, 0
    s_mul_i32 s{sT1}, s{sMat}, 56
    s_sub_u32 s{sT0}, s{sT0}, s{sT1}
    s_cmp_ge_u32 s{sT0}, 28
    s_cselect_b32 s{sKh}, 1, 0
    s_mul_i32 s{sT1}, s{sKh}, 28
    s_sub_u32 s{sCg}, s{sT0}, s{sT1}
    s_and_b32 s{sT0}, s2, 63
    s_lshr_b32 s{sT1}, s2, 6
    s_mov_b32 s{sStride}, 3584
    s_cmp_lt_u32 s2, 128
    s_cselect_b32 s{sCg}, s{sT0}, s{sCg}
    s_cselect_b32 s{sKh}, s{sT1}, s{sKh}
    s_cselect_b32 s{sStride}, 8192, s{sStride}
    s_cselect_b32 s{sMat}, 0, s{sMat}
    s_lshr_b32 s{sT0}, s{sIdx}, 4            ; b
    s_lshl_b32 s{sT1}, s{sHkv}, 1
    s_add_u32 s{sT1}, s{sT1}, s{sT0}         ; hkv*2+b
    s_lshl_b32 s{sT1}, s{sT1}, 4
    s_and_b32 s{sT2}, s{sIdx}, 15            ; split
    s_add_u32 s{sPidx}, s{sT1}, s{sT2}
    s_lshr_b32 s{sT0}, s{sIdx}, 1            ; rr
    s_lshl_b32 s{sR}, s{sHkv}, 4
    s_add_u32 s{sR}, s{sR}, s{sT0}
    s_and_b32 s{sC}, s{sIdx}, 1
    s_mul_i32 s{sW0}, s{sR}, 14
    s_and_b32 s{sW0}, s{sW0}, -4
    s_mul_i32 s{sLds}, s{sWave}, {WREG}
    s_waitcnt lgkmcnt(0)
    s_load_dword s{sEp}, s[{P_WS}:{P_WS+1}], {WS_EPOCH}
    """)
    mksrd(rWS, P_WS, None, WS_SIZE)
    mksrd(rX, P_X, None, 2048)
    a(f"s_cmp_eq_u32 s{sWave}, 4")
    a("s_cbranch_scc1 L_helper")

    vm = VM(a)
    vToff = V("Toff", 2); vKoff = V("Koff", 4); vVoff = V("Voff", 2); vWOoff = V("WOoff", 2); vWDoff = V("WDoff")
    vKrd = V("Krd", 4); vVrd = V("Vrd", 8); vTrd = V("Trd", 4); vWrd = V("Wrd", 4)
    vX = V("X", 8, 4)
    vF = V("F", 32, 4)
    vS = V("S", 32, 4)
    vP = V("P", 16, 4)
    vQ = V("Q", 16, 4)
    vOa = V("Oa", 32, 4)
    vL = V("L", 4, 4); vOnes = V("ones", 4, 4)
    vA2 = V("A2", 16, 4); vAd = V("Ad", 8, 4); vAcc = V("Acc", 4, 4)
    vM = V("M"); vNM = V("NM")
    vA = V("addrA"); vB = V("addrB"); vC = V("addrC"); vD = V("addrD")
    a(f"""
    s_cmp_eq_u32 s{sMat}, 1
    s_cselect_b32 s{sT0}, s{P_WU}, s{P_WG}
    s_cselect_b32 s{sT1}, s{P_WU+1}, s{P_WG+1}
    s_cmp_lt_u32 s2, 128
    s_cselect_b32 s{sT0}, s{P_WQ}, s{sT0}
    s_cselect_b32 s{sT1}, s{P_WQ+1}, s{sT1}
    s_mul_i32 s{sT2}, s{sKh}, s{sStride}
    s_lshl_b32 s{sT2}, s{sT2}, 8
    s_lshl_b32 s{sT3}, s{sCg}, 7
    s_add_u32 s{sT2}, s{sT2}, s{sT3}
    s_add_u32 s{rT}, s{sT0}, s{sT2}
    s_addc_u32 s{rT+1}, s{sT1}, 0
    s_mul_i32 s{rT+2}, s{sStride}, 255
    s_add_u32 s{rT+2}, s{rT+2}, 128
    s_mov_b32 s{rT+3}, 0x20000
    v_and_b32 v{vT}, 1, v{vN}
    v_lshlrev_b32 v{vT}, 10, v{vT}
    v_lshl_add_u32 v{vT}, v{vG}, 4, v{vT}
    s_lshl_b32 s{sT0}, s{sKh}, 9
    s_lshl_b32 s{sT1}, s{sWave}, 7
    s_add_u32 s{sT0}, s{sT0}, s{sT1}
    v_add_u32 v{vA}, s{sT0}, v{vT}
    v_lshrrev_b32 v{vT}, 3, v{vLane}
    v_and_b32 v{vU}, 7, v{vLane}
    v_and_b32 v{vW}, 2, v{vT}
    v_xor_b32 v{vU}, v{vU}, v{vW}
    v_lshlrev_b32 v{vU}, 4, v{vU}
    s_lshl_b32 s{sT0}, s{sWave}, 6
    v_add_u32 v{vW}, s{sT0}, v{vT}
    v_mul_lo_u32 v{vW}, v{vW}, s{sStride}
    v_add_u32 v{vToff}, v{vW}, v{vU}
    v_xor_b32 v{vToff+1}, 64, v{vToff}
    s_lshl_b32 s{sT0}, s{sWave}, 7
    v_lshl_add_u32 v{vW}, v{vT}, 10, v{vU}
    v_add_u32 v{vWOoff}, s{sT0}, v{vW}
    v_xor_b32 v{vWOoff+1}, 64, v{vWOoff}
    v_and_b32 v{vU}, 7, v{vLane}
    v_and_b32 v{vW}, 6, v{vT}
    v_xor_b32 v{vU}, v{vU}, v{vW}
    v_lshlrev_b32 v{vU}, 4, v{vU}
    v_lshl_add_u32 v{vW}, v{vT}, 10, v{vU}
    v_add_u32 v{vWDoff}, s{sT0}, v{vW}
    """)
    def dma(voff, srdr, soff, ldsoff, pol, tag):
        if isinstance(ldsoff, tuple):
            a(f"s_add_u32 m0, {ldsoff[1]}, {ldsoff[2]}")
        else:
            a(f"s_add_u32 m0, s{sLds}, {ldsoff}")
        if isinstance(soff, int):
            if soff == 0: so = "0"
            else:
                a(f"s_mov_b32 s{sSo}, {soff}"); so = f"s{sSo}"
        else: so = soff
        a(f"buffer_load_dwordx4 v{voff}, {srd(srdr)}, {so} offen {pol} lds")
        vm.issue(tag)
    hasT = "L_noT1"
    a("s_cmp_ge_u32 s2, 240")
    a(f"s_cbranch_scc1 {hasT}")
    a(f"buffer_load_dwordx4 v[{vX}:{vX+3}], v{vA}, {srd(rX)}, 0 offen"); vm.issue("X")
    a(f"buffer_load_dwordx4 v[{vX+4}:{vX+7}], v{vA}, {srd(rX)}, 0 offen offset:64"); vm.issue("X")
    a(f"s_lshl_b32 s{sT0}, s{sStride}, 3")
    a(f"s_mov_b32 s{sT1}, 0")
    for i in range(8):
        dma(vToff + (i & 1), rT, f"s{sT1}", 6 * 4096 + i * 1024, cfg.wpol, "T")
        if i < 7: a(f"s_add_u32 s{sT1}, s{sT1}, s{sT0}")
    a(f"{hasT}:")
    a(f"""
    s_lshr_b32 s{sT0}, s{sIdx}, 4
    s_lshl_b32 s{sT0}, s{sT0}, 3
    s_add_u32 s{sT0}, s{sT0}, s{sHkv}        ; b*8+hkv
    s_lshl_b32 s{sT0}, s{sT0}, 21
    s_and_b32 s{sT1}, s{sIdx}, 15
    s_lshl_b32 s{sT1}, s{sT1}, 17
    s_add_u32 s{sT0}, s{sT0}, s{sT1}
    """)
    mksrd(rK, P_K, f"s{sT0}", 131072)
    mksrd(rV, P_V, f"s{sT0}", 131072)
    a(f"""
    s_lshl_b32 s{sT0}, s{sWave}, 10
    v_lshlrev_b32 v{vT}, 8, v{vG}
    v_add_u32 v{vT}, s{sT0}, v{vT}           ; wv*1024 + k4*256
    v_xor_b32 v{vU}, v{vN}, v{vG}
    v_lshl_add_u32 v{vKoff}, v{vU}, 4, v{vT}
    v_xor_b32 v{vKoff+1}, 64, v{vKoff}
    v_xor_b32 v{vKoff+2}, 128, v{vKoff}
    v_xor_b32 v{vKoff+3}, 192, v{vKoff}
    v_lshlrev_b32 v{vU}, 1, v{vG}
    v_xor_b32 v{vU}, v{vN}, v{vU}
    v_lshl_add_u32 v{vVoff}, v{vU}, 4, v{vT}
    v_xor_b32 v{vVoff+1}, 128, v{vVoff}
    """)
    def slotV(j): return SPARE if j == 0 else (j - 1) * 4096
    def issueK(u):
        for i in range(4):
            dma(vKoff + i, rK, (16 * u + 4 * i) * 1024, u * 4096 + i * 1024, cfg.kvpol, f"K{u}")
    def issueV(j):
        for i in range(4):
            dma(vVoff + (i & 1), rV, (16 * j + 4 * i) * 1024, slotV(j) + i * 1024, cfg.kvpol, f"V{j}")
    def issueP2():
        for i in range(4):
            dma(vWOoff + (i & 1), rWO, 8192 * i, 7 * 4096 + i * 1024, cfg.wpol, "WO")
        for i in range(2):
            a(f"s_lshl_b32 s{sT0}, s{sWave}, 11")
            a(f"s_add_u32 s{sT0}, s{sT0}, {L_WD + 1024 * i}")
            dma(vWDoff, rWD, 8192 * i, ("abs", f"s{sT0}", 0), cfg.wpol, "WD")
    WK = cfg.WK
    nk = 0
    first = max(1, WK - 2)
    for u in range(first): issueK(u); nk += 1
    a(f"""
    v_xor_b32 v{vU}, v{vG}, v{vN}
    v_lshlrev_b32 v{vU}, 4, v{vU}
    v_lshl_add_u32 v{vU}, v{vN}, 8, v{vU}
    v_add_u32 v{vKrd}, s{sLds}, v{vU}
    v_xor_b32 v{vKrd+1}, 64, v{vKrd}
    v_xor_b32 v{vKrd+2}, 128, v{vKrd}
    v_xor_b32 v{vKrd+3}, 192, v{vKrd}
    v_lshrrev_b32 v{vT}, 2, v{vLane}         ; rho = l>>2
    v_and_b32 v{vU}, 7, v{vT}
    v_lshlrev_b32 v{vU}, 5, v{vU}
    v_lshl_add_u32 v{vU}, v{vT}, 8, v{vU}
    v_and_b32 v{vW}, 3, v{vLane}             ; c4
    v_lshl_add_u32 v{vU}, v{vW}, 3, v{vU}
    v_add_u32 v{vVrd}, s{sLds}, v{vU}
    """)
    for dt in range(1, 8): a(f"v_xor_b32 v{vVrd+dt}, {dt << 5}, v{vVrd}")
    a(f"""
    v_and_b32 v{vU}, 3, v{vT}                ; r
    v_lshl_add_u32 v{vA}, v{vG}, 3, v{vU}    ; 8g+r
    v_lshrrev_b32 v{vU}, 1, v{vU}            ; bit1(r)
    v_and_b32 v{vB}, 1, v{vG}
    v_lshl_add_u32 v{vU}, v{vB}, 1, v{vU}    ; f
    v_lshlrev_b32 v{vU}, 5, v{vU}
    v_lshl_add_u32 v{vU}, v{vA}, 7, v{vU}
    v_lshl_add_u32 v{vU}, v{vW}, 3, v{vU}
    v_add_u32 v{vTrd}, s{sLds}, v{vU}
    v_xor_b32 v{vTrd+1}, 32, v{vTrd}
    v_xor_b32 v{vTrd+2}, 64, v{vTrd}
    v_xor_b32 v{vTrd+3}, 96, v{vTrd}
    v_lshrrev_b32 v{vU}, 1, v{vT}
    v_and_b32 v{vU}, 3, v{vU}
    v_lshlrev_b32 v{vU}, 5, v{vU}
    v_lshl_add_u32 v{vU}, v{vT}, 7, v{vU}
    v_lshl_add_u32 v{vU}, v{vW}, 3, v{vU}
    s_lshl_b32 s{sT0}, s{sWave}, 11
    s_add_u32 s{sT0}, s{sT0}, {L_WD}
    v_add_u32 v{vWrd}, s{sT0}, v{vU}
    v_xor_b32 v{vWrd+1}, 32, v{vWrd}
    v_xor_b32 v{vWrd+2}, 64, v{vWrd}
    v_xor_b32 v{vWrd+3}, 96, v{vWrd}
    v_mov_b32 v{vOnes}, 0x3f803f80
    v_mov_b32 v{vOnes+1}, 0x3f803f80
    v_mov_b32 v{vOnes+2}, 0x3f803f80
    v_mov_b32 v{vOnes+3}, 0x3f803f80
    s_lshl_b32 s{sT0}, s{sR}, 15             ; r*32 rows*1024 B
    s_lshl_b32 s{sT1}, s{sC}, 9
    s_add_u32 s{sT0}, s{sT0}, s{sT1}
    """)
    mksrd(rWO, P_WO, f"s{sT0}", 31 * 1024 + 512)
    a(f"s_lshl_b32 s{sT0}, s{sW0}, 10\ns_add_u32 s{sT0}, s{sT0}, s{sT1}")
    mksrd(rWD, P_WD, f"s{sT0}", 15 * 1024 + 512)
    a("s_waitcnt lgkmcnt(0)")
    a(f"""
    s_add_u32 s{sEn}, s{sEp}, 1
    s_not_b32 s{sEnn}, s{sEn}
    s_and_b32 s{sT0}, s{sEn}, s{sMask}
    v_mov_b32 v{vTag}, s{sT0}
    """)
    if True:
        a("s_cmp_ge_u32 s2, 240")
        a("s_cbranch_scc1 L_noT2")
        vm.wait("T")
        a("L_noT2:")
        while nk < WK and nk < 6:
            issueK(nk); nk += 1
        a("s_cmp_ge_u32 s2, 240")
        a("s_cbranch_scc1 L_noT3")
        for t in range(2):
            for nt in range(4):
                for hf in range(2):
                    d = vF + (t * 4 + nt) * 4 + 2 * hf
                    a(f"ds_read_b64_tr_b16 v[{d}:{d+1}], v{vTrd+nt} offset:{6*4096 + (32*t + 4*hf)*128}")
            if t == 0: a("s_waitcnt lgkmcnt(0)")
        for nt in range(4):
            d = vF + nt * 4
            a(f"v_mfma_f32_16x16x32_bf16 v[{vS+4*nt}:{vS+4*nt+3}], v[{d}:{d+3}], v[{vX}:{vX+3}], 0")
        a("s_waitcnt lgkmcnt(0)")
        for nt in range(4):
            d = vF + 16 + nt * 4
            a(f"v_mfma_f32_16x16x32_bf16 v[{vS+4*nt}:{vS+4*nt+3}], v[{d}:{d+3}], v[{vX+4}:{vX+7}], v[{vS+4*nt}:{vS+4*nt+3}]")
        a(f"""
        s_lshl_b32 s{sT0}, s{sWave}, 9
        s_add_u32 s{sT0}, s{sT0}, {L_P0}
        v_lshlrev_b32 v{vA}, 8, v{vN}
        v_lshl_add_u32 v{vA}, v{vG}, 4, v{vA}
        v_add_u32 v{vA}, s{sT0}, v{vA}
        s_mov_b32 exec_lo, 0x00030003
        s_mov_b32 exec_hi, 0x00030003
        """)
        for nt in range(4):
            a(f"ds_write_b128 v{vA}, v[{vS+4*nt}:{vS+4*nt+3}] offset:{64*nt}")
        a("s_mov_b64 exec, -1")
        a("s_waitcnt lgkmcnt(0)")
        a("L_noT3:")
    if cfg.stamps:
        for i in range(1, 11): a(f"s_mov_b32 s{streg(i)}, 0")
    a("s_barrier   ; B0")
    stamp("B0")
    order = [f"K{u}" for u in range(8)] + ["V0"]
    issued = nk
    landed = 0
    while issued < 9:
        vm.wait(order[issued - WK]) if issued - WK >= 0 else None
        if issued < 8: issueK(issued)
        else: issueV(0)
        issued += 1
    a("s_barrier   ; B1 (q ready)")
    stamp("B1")
    a(f"""
    v_and_b32 v{vT}, 3, v{vN}
    v_lshlrev_b32 v{vT}, 8, v{vT}
    v_lshl_add_u32 v{vT}, v{vG}, 4, v{vT}
    v_add_u32 v{vA}, {L_Q}, v{vT}
    """)
    for j in range(4):
        a(f"ds_read_b128 v[{vQ+4*j}:{vQ+4*j+3}], v{vA} offset:{64*j}")
    def readK(u):
        b = vF + (u & 1) * 16
        for j in range(4):
            a(f"ds_read_b128 v[{b+4*j}:{b+4*j+3}], v{vKrd+j} offset:{u*4096}")
    unit_order = order[:]
    vm.wait("K0")
    readK(0)
    nextV = 1
    def maybe_issue_V():
        nonlocal nextV
        j = nextV
        hist = unit_order
        if cfg.WV < len(hist):
            vm.wait(hist[len(hist) - cfg.WV])
        issueV(j); hist.append(f"V{j}"); nextV += 1
    for u in range(8):
        if u < 7:
            vm.wait(f"K{u+1}")
            readK(u + 1)
            a("s_waitcnt lgkmcnt(4)")
        else:
            a("s_waitcnt lgkmcnt(0)")
        b = vF + (u & 1) * 16
        for j in range(4):
            c = "0" if j == 0 else f"v[{vS+4*u}:{vS+4*u+3}]"
            a(f"v_mfma_f32_16x16x32_bf16 v[{vS+4*u}:{vS+4*u+3}], v[{b+4*j}:{b+4*j+3}], v[{vQ+4*j}:{vQ+4*j+3}], {c}")
        if u < 7: maybe_issue_V()
        if u == 7 and cfg.p2pos == "afterS": issueP2()
    if cfg.p2pos == "end": issueP2()
    stamp("S")
    if cfg.mimic:
        a(f"s_mov_b32 s{sT0}, {f2u(SCALE):#x}")
        for i in range(0, 32, 2):
            x0, x1 = vS + i, vS + i + 1
            a(f"""
            v_cvt_pk_bf16_f32 v{vT}, v{x0}, v{x1}
            v_lshlrev_b32 v{x0}, 16, v{vT}
            v_and_b32 v{x1}, 0xffff0000, v{vT}
            v_mul_f32 v{x0}, s{sT0}, v{x0}
            v_mul_f32 v{x1}, s{sT0}, v{x1}
            v_cvt_pk_bf16_f32 v{vT}, v{x0}, v{x1}
            v_lshlrev_b32 v{x0}, 16, v{vT}
            v_and_b32 v{x1}, 0xffff0000, v{vT}
            """)
        cexp = LOG2E
    else:
        cexp = LOG2E * SCALE
    a(f"v_max3_f32 v{vM}, v{vS}, v{vS+1}, v{vS+2}")
    i = 3
    while i < 32:
        if i + 1 < 32:
            a(f"v_max3_f32 v{vM}, v{vM}, v{vS+i}, v{vS+i+1}"); i += 2
        else:
            a(f"v_max_f32 v{vM}, v{vM}, v{vS+i}"); i += 1
    a(f"""
    s_lshl_b32 s{sT0}, s{sWave}, 4
    s_add_u32 s{sT0}, s{sT0}, {L_MX}
    v_lshlrev_b32 v{vA}, 6, v{vN}
    v_lshl_add_u32 v{vA}, v{vG}, 2, v{vA}
    v_add_u32 v{vA}, s{sT0}, v{vA}
    s_mov_b32 exec_lo, 0x000f000f
    s_mov_b32 exec_hi, 0x000f000f
    ds_write_b32 v{vA}, v{vM}
    s_mov_b64 exec, -1
    v_and_b32 v{vT}, 3, v{vN}
    v_lshlrev_b32 v{vT}, 6, v{vT}
    v_add_u32 v{vA}, {L_MX}, v{vT}
    s_waitcnt lgkmcnt(0)
    s_barrier   ; B2
    """)
    stamp("B2")
    for i in range(4):
        a(f"ds_read_b128 v[{vF+4*i}:{vF+4*i+3}], v{vA} offset:{16*i}")
    a("s_waitcnt lgkmcnt(0)")
    a(f"v_max3_f32 v{vM}, v{vF}, v{vF+1}, v{vF+2}")
    for i in range(3, 15, 2):
        a(f"v_max3_f32 v{vM}, v{vM}, v{vF+i}, v{vF+i+1}")
    a(f"v_max_f32 v{vM}, v{vM}, v{vF+15}")
    a(f"""
    s_mov_b32 s{sT0}, {f2u(cexp):#x}
    v_mul_f32 v{vM}, s{sT0}, v{vM}          ; M' = c*M
    v_sub_f32 v{vNM}, 0, v{vM}
    """)
    for i in range(32):
        a(f"v_fma_f32 v{vS+i}, v{vS+i}, s{sT0}, v{vNM}")
    for i in range(32):
        a(f"v_exp_f32 v{vS+i}, v{vS+i}")
    for i in range(16):
        a(f"v_cvt_pk_bf16_f32 v{vP+i}, v{vS+2*i}, v{vS+2*i+1}")
    for ks in range(4):
        u0, u1 = 2 * ks, 2 * ks + 1
        vm.wait(f"V{u1}")
        def rd(dt):
            d = vF + 4 * dt
            a(f"ds_read_b64_tr_b16 v[{d}:{d+1}], v{vVrd+dt} offset:{slotV(u0)}")
            a(f"ds_read_b64_tr_b16 v[{d+2}:{d+3}], v{vVrd+dt} offset:{slotV(u1)}")
        for dt in range(4): rd(dt)
        cL = "0" if ks == 0 else f"v[{vL}:{vL+3}]"
        a(f"v_mfma_f32_16x16x32_bf16 v[{vL}:{vL+3}], v[{vOnes}:{vOnes+3}], v[{vP+4*ks}:{vP+4*ks+3}], {cL}")
        for dt in range(8):
            if dt + 4 < 8:
                a("s_waitcnt lgkmcnt(6)")
            else:
                a(f"s_waitcnt lgkmcnt({2*(7-dt)})")
            d = vF + 4 * dt
            c = "0" if ks == 0 else f"v[{vOa+4*dt}:{vOa+4*dt+3}]"
            a(f"v_mfma_f32_16x16x32_bf16 v[{vOa+4*dt}:{vOa+4*dt+3}], v[{d}:{d+3}], v[{vP+4*ks}:{vP+4*ks+3}], {c}")
            if dt + 4 < 8: rd(dt + 4)
    stamp("PV")
    a(f"""
    s_add_u32 s{sT0}, s{sLds}, {SPARE}
    v_mul_u32_u24 v{vA}, 528, v{vN}
    v_lshl_add_u32 v{vA}, v{vG}, 4, v{vA}
    v_add_u32 v{vA}, s{sT0}, v{vA}
    v_mul_u32_u24 v{vB}, 528, v{vN}
    v_add_u32 v{vB}, s{sT0}, v{vB}
    s_mov_b32 exec_lo, 0x000f000f
    s_mov_b32 exec_hi, 0x000f000f
    """)
    for dt in range(8):
        a(f"ds_write_b128 v{vA}, v[{vOa+4*dt}:{vOa+4*dt+3}] offset:{64*dt}")
    a(f"""
    s_mov_b32 exec_lo, 0x0000000f
    s_mov_b32 exec_hi, 0
    ds_write_b32 v{vB}, v{vL} offset:512
    s_mov_b64 exec, -1
    s_mul_i32 s{sT0}, s{sWave}, 528
    s_add_u32 s{sT0}, s{sT0}, {SPARE}
    v_lshlrev_b32 v{vT}, 4, v{vLane}
    v_add_u32 v{vA}, s{sT0}, v{vT}
    v_add_u32 v{vB}, {2*WREG}, v{vA}
    s_lshl_b32 s{sT0}, s{sPidx}, 11
    s_lshl_b32 s{sT1}, s{sWave}, 9
    s_add_u32 s{sT0}, s{sT0}, s{sT1}
    s_add_u32 s{sT0}, s{sT0}, {WS_AP}
    v_add_u32 v{vC}, s{sT0}, v{vT}
    s_lshl_b32 s{sT0}, s{sPidx}, 2
    s_add_u32 s{sT0}, s{sT0}, s{sWave}
    s_lshl_b32 s{sT0}, s{sT0}, 4
    s_add_u32 s{sT0}, s{sT0}, {WS_ML}
    v_mov_b32 v{vD}, s{sT0}
    v_cmp_eq_u32 vcc, 32, v{vLane}
    v_cndmask_b32 v{vC}, v{vC}, v{vD}, vcc
    v_readlane_b32 s{sMp}, v{vM}, s{sWave}
    s_waitcnt lgkmcnt(0)
    s_barrier   ; B3
    s_mov_b32 exec_lo, -1
    s_mov_b32 exec_hi, 1
    ds_read_b128 v[{vF}:{vF+3}], v{vA}
    ds_read_b128 v[{vF+4}:{vF+7}], v{vA} offset:{WREG}
    ds_read_b128 v[{vF+8}:{vF+11}], v{vB}
    ds_read_b128 v[{vF+12}:{vF+15}], v{vB} offset:{WREG}
    s_waitcnt lgkmcnt(2)
    """)
    for k in range(4): a(f"v_add_f32 v{vF+k}, v{vF+k}, v{vF+4+k}")
    a("s_waitcnt lgkmcnt(0)")
    for k in range(4): a(f"v_add_f32 v{vF+8+k}, v{vF+8+k}, v{vF+12+k}")
    for k in range(4): a(f"v_add_f32 v{vF+k}, v{vF+k}, v{vF+8+k}")
    a(f"v_mov_b32 v{vT}, v{vF}")
    for k in range(4): a(f"v_bfi_b32 v{vF+k}, s{sMask}, v{vTag}, v{vF+k}")
    a(f"""
    s_mov_b32 exec_lo, 0
    s_mov_b32 exec_hi, 1
    v_mov_b32 v{vF}, s{sMp}
    v_mov_b32 v{vF+1}, v{vT}
    v_mov_b32 v{vF+2}, s{sEn}
    v_mov_b32 v{vF+3}, s{sEnn}
    s_mov_b32 exec_lo, -1
    buffer_store_dwordx4 v[{vF}:{vF+3}], v{vC}, {srd(rWS)}, 0 offen sc1
    s_mov_b64 exec, -1
    """)
    vm.issue("pub1")
    stamp("pub1")
    a(f"""
    s_lshr_b32 s{sT0}, s{sWave}, 1          ; b
    s_lshl_b32 s{sT1}, s{sHkv}, 1
    s_add_u32 s{sT1}, s{sT1}, s{sT0}
    s_lshl_b32 s{sT1}, s{sT1}, 4
    s_lshr_b32 s{sT2}, s{sIdx}, 3
    v_lshrrev_b32 v{vT}, 2, v{vLane}
    v_add_u32 v{vT}, s{sT1}, v{vT}          ; pidx
    v_lshlrev_b32 v{vU}, 2, v{vT}
    v_add_u32 v{vU}, s{sT2}, v{vU}
    v_lshlrev_b32 v{vU}, 4, v{vU}
    v_add_u32 v{vB}, {WS_ML}, v{vU}
    s_lshl_b32 s{sT2}, s{sT2}, 9            ; hh*512
    s_lshr_b32 s{sT3}, s{sIdx}, 1
    s_and_b32 s{sT3}, s{sT3}, 3             ; dq
    s_lshl_b32 s{sT3}, s{sT3}, 7            ; 8*dq*16
    s_add_u32 s{sT2}, s{sT2}, s{sT3}
    s_and_b32 s{sT3}, s{sWave}, 1
    s_lshl_b32 s{sT3}, s{sT3}, 6            ; 4*half*16
    s_add_u32 s{sT2}, s{sT2}, s{sT3}
    s_add_u32 s{sT2}, s{sT2}, {WS_AP}
    v_lshlrev_b32 v{vT}, 11, v{vT}
    v_and_b32 v{vU}, 3, v{vLane}
    v_lshl_add_u32 v{vT}, v{vU}, 4, v{vT}
    v_add_u32 v{vA}, s{sT2}, v{vT}
    """)
    vm.wait("WD")
    for nt in range(4):
        for hf in range(2):
            d = vA2 + 4 * nt + 2 * hf
            a(f"ds_read_b64_tr_b16 v[{d}:{d+1}], v{vTrd+nt} offset:{7*4096 + 4*hf*128}")
    for nt in range(4):
        a(f"ds_read_b64_tr_b16 v[{vAd+2*nt}:{vAd+2*nt+1}], v{vWrd+nt}")
    vSel = V("Sel", 4); vHb = V("Hb", 8, 2); vOb = V("Ob", 16, 4); vGb = V("Gb")
    a(f"""
    v_lshrrev_b32 v{vT}, 1, v{vN}
    v_and_b32 v{vU}, 1, v{vN}
    v_lshlrev_b32 v{vW}, 5, v{vU}
    v_lshl_add_u32 v{vW}, v{vG}, 3, v{vW}
    v_add_u32 v{vW}, {L_H}, v{vW}            ; h address
    v_lshlrev_b32 v{vU}, 6, v{vU}
    v_lshl_add_u32 v{vU}, v{vG}, 4, v{vU}
    v_add_u32 v{vU}, {L_O2}, v{vU}           ; o address
    v_mov_b32 v{vD}, {L_ZERO}
    """)
    for t in range(4):
        a(f"v_cmp_eq_u32 vcc, {t}, v{vT}")
        a(f"v_cndmask_b32 v{vSel+t}, v{vD}, v{vU}, vcc")
        a(f"v_cndmask_b32 v{vC}, v{vD}, v{vW}, vcc")
        a(f"ds_read_b64 v[{vHb+2*t}:{vHb+2*t+1}], v{vC}")
    a(f"""
    s_lshr_b32 s{sT0}, s{sWave}, 1
    s_lshl_b32 s{sT0}, s{sT0}, 2
    s_add_u32 s{sT0}, s{sT0}, {L_G}
    v_mov_b32 v{vT}, s{sT0}
    ds_read_b32 v{vGb}, v{vT}
    s_waitcnt lgkmcnt(0)
    """)
    for t in range(4):
        c = "0" if t == 0 else f"v[{vAcc}:{vAcc+3}]"
        a(f"v_mfma_f32_16x16x16_bf16 v[{vAcc}:{vAcc+3}], v[{vAd+2*t}:{vAd+2*t+1}], v[{vHb+2*t}:{vHb+2*t+1}], {c}")
    vO = vF; vML = vF + 4; y = vF + 8; y2 = vF + 9; z = vF + 10
    a(f"s_mov_b32 s{sSpin}, {cfg.spin}")
    a("L_h1:")
    a(f"""
    buffer_load_dwordx4 v[{vO}:{vO+3}], v{vA}, {srd(rWS)}, 0 offen sc1
    buffer_load_dwordx4 v[{vML}:{vML+3}], v{vB}, {srd(rWS)}, 0 offen sc1
    s_waitcnt vmcnt(0)
    v_bitop3_b32 v{y}, v{vO}, v{vO+1}, v{vTag} bitop3:0x7e
    v_bitop3_b32 v{y2}, v{vO+2}, v{vO+3}, v{vTag} bitop3:0x7e
    v_or_b32 v{y}, v{y}, v{y2}
    v_and_b32 v{y}, s{sMask}, v{y}
    v_xor_b32 v{y2}, s{sEn}, v{vML+2}
    v_xor_b32 v{z}, s{sEnn}, v{vML+3}
    v_or3_b32 v{y}, v{y}, v{y2}, v{z}
    v_cmp_ne_u32 vcc, 0, v{y}
    s_cbranch_vccz L_h1_done
    s_sub_u32 s{sSpin}, s{sSpin}, 1
    s_cmp_lg_u32 s{sSpin}, 0
    s_cbranch_scc1 L_h1
    """)
    a("L_h1_done:")
    vm.q = []
    stamp("h1")
    m = vF + 8; t1 = vF + 9; f = vF + 10; lf = vF + 11; t2 = vF + 12
    a(f"""
    v_max_f32_dpp v{m}, v{vML}, v{vML} row_ror:4 row_mask:0xf bank_mask:0xf
    v_not_b32 v{t2}, s{sMask}
    v_max_f32_dpp v{m}, v{m}, v{m} row_ror:8 row_mask:0xf bank_mask:0xf
    v_and_b32 v{vO}, v{vO}, v{t2}
    v_and_b32 v{vO+1}, v{vO+1}, v{t2}
    v_mov_b32 v{t1}, v{m}
    v_and_b32 v{vO+2}, v{vO+2}, v{t2}
    v_and_b32 v{vO+3}, v{vO+3}, v{t2}
    v_permlane32_swap_b32 v{m}, v{t1}
    v_max_f32 v{m}, v{m}, v{t1}
    v_mov_b32 v{t1}, v{m}
    v_permlane16_swap_b32 v{m}, v{t1}
    v_max_f32 v{m}, v{m}, v{t1}
    v_sub_f32 v{f}, v{vML}, v{m}
    v_exp_f32 v{f}, v{f}
    v_mul_f32 v{lf}, v{f}, v{vML+1}
    v_mul_f32 v{vO}, v{f}, v{vO}
    v_mul_f32 v{vO+1}, v{f}, v{vO+1}
    v_mul_f32 v{vO+2}, v{f}, v{vO+2}
    v_mul_f32 v{vO+3}, v{f}, v{vO+3}
    v_mov_b32 v{t1}, v{lf}
    v_permlane32_swap_b32 v{vO}, v{vO+1}
    v_permlane32_swap_b32 v{vO+2}, v{vO+3}
    v_permlane32_swap_b32 v{lf}, v{t1}
    v_add_f32 v{vO}, v{vO}, v{vO+1}
    v_add_f32 v{vO+2}, v{vO+2}, v{vO+3}
    v_add_f32 v{lf}, v{lf}, v{t1}
    v_mov_b32 v{t1}, v{lf}
    v_permlane16_swap_b32 v{vO}, v{vO+2}
    v_permlane16_swap_b32 v{lf}, v{t1}
    v_add_f32 v{vO}, v{vO}, v{vO+2}
    v_add_f32 v{lf}, v{lf}, v{t1}
    v_add_f32_dpp v{vO}, v{vO}, v{vO} row_ror:4 row_mask:0xf bank_mask:0xf
    v_add_f32_dpp v{lf}, v{lf}, v{lf} row_ror:4 row_mask:0xf bank_mask:0xf
    v_add_f32_dpp v{vO}, v{vO}, v{vO} row_ror:8 row_mask:0xf bank_mask:0xf
    v_add_f32_dpp v{lf}, v{lf}, v{lf} row_ror:8 row_mask:0xf bank_mask:0xf
    v_rcp_f32 v{lf}, v{lf}
    v_mul_f32 v{vO}, v{vO}, v{vGb}
    v_mul_f32 v{vO}, v{vO}, v{lf}
    v_cvt_pk_bf16_f32 v{vO}, v{vO}, v{vO}
    v_and_b32 v{t1}, 1, v{vG}
    v_lshlrev_b32 v{t1}, 1, v{t1}
    v_lshrrev_b32 v{t2}, 1, v{vG}
    v_or_b32 v{t1}, v{t1}, v{t2}
    v_and_b32 v{t2}, 3, v{vLane}
    v_lshl_add_u32 v{t1}, v{t2}, 2, v{t1}
    v_lshlrev_b32 v{t1}, 1, v{t1}
    s_lshr_b32 s{sT0}, s{sWave}, 1
    s_lshl_b32 s{sT0}, s{sT0}, 6
    s_and_b32 s{sT1}, s{sWave}, 1
    s_lshl_b32 s{sT1}, s{sT1}, 5
    s_add_u32 s{sT0}, s{sT0}, s{sT1}
    s_add_u32 s{sT0}, s{sT0}, {L_O2}
    v_add_u32 v{t1}, s{sT0}, v{t1}
    s_mov_b32 exec_lo, 0x000f000f
    s_mov_b32 exec_hi, 0x000f000f
    ds_write_b16 v{t1}, v{vO}
    s_mov_b64 exec, -1
    s_lshl_b32 s{sT0}, s{sR}, 1
    s_add_u32 s{sT0}, s{sT0}, s{sC}
    s_lshl_b32 s{sT0}, s{sT0}, 11
    s_lshl_b32 s{sT1}, s{sWave}, 9
    s_add_u32 s{sT0}, s{sT0}, s{sT1}
    s_add_u32 s{sT0}, s{sT0}, {WS_OP}
    v_lshlrev_b32 v{vC}, 7, v{vG}
    v_lshl_add_u32 v{vC}, v{vN}, 4, v{vC}
    v_add_u32 v{vC}, s{sT0}, v{vC}
    s_waitcnt lgkmcnt(0)
    s_barrier   ; B4
    """)
    for t in range(4):
        a(f"ds_read_b128 v[{vOb+4*t}:{vOb+4*t+3}], v{vSel+t}")
    for t in range(4):
        a(f"s_waitcnt lgkmcnt({3-t})")
        a(f"v_mfma_f32_16x16x32_bf16 v[{vAcc}:{vAcc+3}], v[{vA2+4*t}:{vA2+4*t+3}], v[{vOb+4*t}:{vOb+4*t+3}], v[{vAcc}:{vAcc+3}]")
    for k in range(4): a(f"v_bfi_b32 v{vAcc+k}, s{sMask}, v{vTag}, v{vAcc+k}")
    a(f"""
    s_mov_b32 exec_lo, 0x00ff00ff
    s_mov_b32 exec_hi, 0x00ff00ff
    buffer_store_dwordx4 v[{vAcc}:{vAcc+3}], v{vC}, {srd(rWS)}, 0 offen sc1
    s_mov_b64 exec, -1
    """)
    stamp("pub2")
    a("s_cmp_ge_u32 s2, 64")
    a("s_cbranch_scc1 L_fin_stamps" if cfg.stamps else "s_cbranch_scc1 L_end")
    g0 = vF; g1 = vF + 4; y = vF + 8; y2 = vF + 9; t1 = vF + 10; t2 = vF + 11
    a(f"""
    s_lshr_b32 s{sT0}, s2, 5
    s_lshl_b32 s{sT0}, s{sT0}, 11
    s_lshr_b32 s{sT1}, s2, 3
    s_and_b32 s{sT1}, s{sT1}, 3
    s_lshl_b32 s{sT1}, s{sT1}, 9
    s_add_u32 s{sT0}, s{sT0}, s{sT1}
    s_lshr_b32 s{sT1}, s2, 1
    s_and_b32 s{sT1}, s{sT1}, 3
    s_lshl_b32 s{sT1}, s{sT1}, 7
    s_add_u32 s{sT0}, s{sT0}, s{sT1}
    s_and_b32 s{sT1}, s2, 1
    s_lshl_b32 s{sT1}, s{sT1}, 6
    s_add_u32 s{sT0}, s{sT0}, s{sT1}
    s_add_u32 s{sT0}, s{sT0}, {WS_OP}
    v_lshrrev_b32 v{vT}, 2, v0
    v_lshlrev_b32 v{vT}, 12, v{vT}
    v_and_b32 v{vU}, 3, v0
    v_lshl_add_u32 v{vT}, v{vU}, 4, v{vT}
    v_add_u32 v{vA}, s{sT0}, v{vT}
    s_mov_b32 s{sT3}, 262144
    v_not_b32 v{vD}, s{sMask}
    s_mov_b32 s{sSpin}, {cfg.spin}
    """)
    a("L_h2:")
    a(f"""
    buffer_load_dwordx4 v[{g0}:{g0+3}], v{vA}, {srd(rWS)}, 0 offen sc1
    buffer_load_dwordx4 v[{g1}:{g1+3}], v{vA}, {srd(rWS)}, s{sT3} offen sc1
    s_waitcnt vmcnt(0)
    v_bitop3_b32 v{y}, v{g0}, v{g0+1}, v{vTag} bitop3:0x7e
    v_bitop3_b32 v{y2}, v{g0+2}, v{g0+3}, v{vTag} bitop3:0x7e
    v_bitop3_b32 v{t1}, v{g1}, v{g1+1}, v{vTag} bitop3:0x7e
    v_bitop3_b32 v{t2}, v{g1+2}, v{g1+3}, v{vTag} bitop3:0x7e
    v_or3_b32 v{y}, v{y}, v{y2}, v{t1}
    v_or_b32 v{y}, v{y}, v{t2}
    v_and_b32 v{y}, s{sMask}, v{y}
    v_cmp_ne_u32 vcc, 0, v{y}
    s_cbranch_vccz L_h2_done
    s_sub_u32 s{sSpin}, s{sSpin}, 1
    s_cmp_lg_u32 s{sSpin}, 0
    s_cbranch_scc1 L_h2
    """)
    a("L_h2_done:")
    stamp("h2")
    for k in range(4):
        a(f"v_and_b32 v{g0+k}, v{g0+k}, v{vD}")
        a(f"v_and_b32 v{g1+k}, v{g1+k}, v{vD}")
    for k in range(4): a(f"v_add_f32 v{g0+k}, v{g0+k}, v{g1+k}")
    a(f"""
    v_permlane32_swap_b32 v{g0}, v{g0+1}
    v_permlane32_swap_b32 v{g0+2}, v{g0+3}
    v_add_f32 v{g0}, v{g0}, v{g0+1}
    v_add_f32 v{g0+2}, v{g0+2}, v{g0+3}
    v_permlane16_swap_b32 v{g0}, v{g0+2}
    v_add_f32 v{g0}, v{g0}, v{g0+2}
    v_add_f32_dpp v{g0}, v{g0}, v{g0} row_ror:4 row_mask:0xf bank_mask:0xf
    v_add_f32_dpp v{g0}, v{g0}, v{g0} row_ror:8 row_mask:0xf bank_mask:0xf
    v_and_b32 v{t1}, 1, v{vG}
    v_lshlrev_b32 v{t1}, 1, v{t1}
    v_lshrrev_b32 v{t2}, 1, v{vG}
    v_or_b32 v{t1}, v{t1}, v{t2}
    v_and_b32 v{t2}, 3, v{vLane}
    v_lshl_add_u32 v{t1}, v{t2}, 2, v{t1}
    v_lshlrev_b32 v{t1}, 2, v{t1}
    s_lshl_b32 s{sT0}, s{sWave}, 6
    s_add_u32 s{sT0}, s{sT0}, {L_FIN}
    v_add_u32 v{t1}, s{sT0}, v{t1}
    s_mov_b32 exec_lo, 0x000f000f
    s_mov_b32 exec_hi, 0x000f000f
    ds_write_b32 v{t1}, v{g0}
    s_mov_b64 exec, -1
    v_lshlrev_b32 v{t2}, 4, v{t2}
    v_add_u32 v{t2}, {L_FIN}, v{t2}
    s_lshr_b32 s{sT0}, s2, 5
    s_lshl_b32 s{sT0}, s{sT0}, 9
    s_lshr_b32 s{sT1}, s2, 3
    s_and_b32 s{sT1}, s{sT1}, 3
    s_lshl_b32 s{sT1}, s{sT1}, 7
    s_add_u32 s{sT0}, s{sT0}, s{sT1}
    s_and_b32 s{sT1}, s2, 1
    s_lshl_b32 s{sT1}, s{sT1}, 6
    s_add_u32 s{sT0}, s{sT0}, s{sT1}
    s_lshr_b32 s{sT1}, s2, 1
    s_and_b32 s{sT1}, s{sT1}, 3
    s_lshl_b32 s{sT1}, s{sT1}, 3
    s_add_u32 s{sT0}, s{sT0}, s{sT1}
    v_and_b32 v{vT}, 1, v{vLane}
    v_lshlrev_b32 v{vT}, 10, v{vT}
    v_bfe_u32 v{vU}, v{vLane}, 1, 1
    v_lshl_add_u32 v{vT}, v{vU}, 5, v{vT}
    v_add_u32 v{vT}, s{sT0}, v{vT}
    """)
    mksrd(rO, P_OUT, None, 2048)
    a(f"""
    s_waitcnt lgkmcnt(0)
    s_barrier   ; B5
    s_cmp_lg_u32 s{sWave}, 0
    s_cbranch_scc1 {"L_fin_stamps" if cfg.stamps else "L_end"}
    s_mov_b32 exec_lo, 15
    s_mov_b32 exec_hi, 0
    ds_read_b128 v[{vF}:{vF+3}], v{t2}
    ds_read_b128 v[{vF+4}:{vF+7}], v{t2} offset:64
    ds_read_b128 v[{vF+12}:{vF+15}], v{t2} offset:128
    ds_read_b128 v[{vF+16}:{vF+19}], v{t2} offset:192
    s_waitcnt lgkmcnt(0)
    """)
    for k in range(4):
        a(f"v_add_f32 v{vF+k}, v{vF+k}, v{vF+4+k}")
        a(f"v_add_f32 v{vF+12+k}, v{vF+12+k}, v{vF+16+k}")
    for k in range(4): a(f"v_add_f32 v{vF+k}, v{vF+k}, v{vF+12+k}")
    a(f"""
    v_cvt_pk_bf16_f32 v{vF}, v{vF}, v{vF+1}
    v_cvt_pk_bf16_f32 v{vF+1}, v{vF+2}, v{vF+3}
    buffer_store_dwordx2 v[{vF}:{vF+1}], v{vT}, {srd(rO)}, 0 offen
    s_cmp_lg_u32 s2, 0
    s_cbranch_scc1 {"L_fin_stamps0" if cfg.stamps else "L_end"}
    s_mov_b32 exec_lo, 1
    v_mov_b32 v{vT}, {WS_EPOCH}
    v_mov_b32 v{vU}, s{sEn}
    buffer_store_dword v{vU}, v{vT}, {srd(rWS)}, 0 offen sc1
    """)
    def dump_stamps(vA_, vD_, helper=False):
        a("s_waitcnt vmcnt(0)")
        a(f"s_memrealtime s[{sTl}:{sTl+1}]")
        a("s_waitcnt lgkmcnt(0)")
        if cfg.stamps == 2:
            mksrd(rO, P_DBG, None, 256)
            a("s_mov_b32 exec_lo, 1\ns_mov_b32 exec_hi, 0")
            a(f"s_not_b32 s{sSpin}, s{streg(0)}")
            a(f"v_mov_b32 v{vA_}, 0")
            a(f"v_mov_b32 v{vD_}, s{sSpin}")
            a(f"buffer_atomic_umax v{vD_}, v{vA_}, {srd(rO)}, 0 offen")
            idx = [(i, i) for i in range(1, 10)] + [("l", 10)] if not helper else [(1, 11), (2, 12), (3, 13), (4, 14)]
            for (i, w) in idx:
                a(f"v_mov_b32 v{vD_+1}, s{sTl if i == 'l' else streg(i)}")
                a(f"buffer_atomic_umax v{vD_+1}, v{vA_}, {srd(rO)}, 0 offen offset:{4*w}")
                a("s_nop 1")
            if not helper:
                a(f"v_mov_b32 v{vD_+1}, s{streg(0)}")
                a(f"buffer_atomic_umax v{vD_+1}, v{vA_}, {srd(rO)}, 0 offen offset:{4*15}")
            return
        if cfg.stamps == 3:
            if helper: return
            mksrd(rO, P_DBG, None, 256)
            a("s_mov_b32 exec_lo, 1\ns_mov_b32 exec_hi, 0")
            a(f"v_mov_b32 v{vA_}, 0")
            a(f"s_cmp_lg_u32 s{sWave}, 0")
            a("s_cbranch_scc1 L_end")
            a("s_cmp_lg_u32 s2, 0")
            a("s_cbranch_scc1 L_dbg255")
            for i in range(10):
                a(f"v_mov_b32 v{vD_+i}, s{streg(i)}")
                a(f"buffer_store_dword v{vD_+i}, v{vA_}, {srd(rO)}, 0 offen offset:{4*i}")
            a(f"v_mov_b32 v{vD_+10}, s{sTl}")
            a(f"buffer_store_dword v{vD_+10}, v{vA_}, {srd(rO)}, 0 offen offset:40")
            a("s_endpgm")
            a("L_dbg255:")
            a("s_cmp_lg_u32 s2, 255")
            a("s_cbranch_scc1 L_end")
            for j, i in enumerate((0, 1, 6, 8)):
                a(f"v_mov_b32 v{vD_+j}, s{streg(i)}")
                a(f"buffer_store_dword v{vD_+j}, v{vA_}, {srd(rO)}, 0 offen offset:{44+4*j}")
            a(f"v_mov_b32 v{vD_+10}, s{sTl}")
            a(f"buffer_store_dword v{vD_+10}, v{vA_}, {srd(rO)}, 0 offen offset:60")
            return
        a(f"s_lshl_b32 s{sSpin}, s2, 3\ns_add_u32 s{sSpin}, s{sSpin}, s{sWave}\ns_lshl_b32 s{sSpin}, s{sSpin}, 6\ns_add_u32 s{sSpin}, s{sSpin}, {WS_STAMP}")
        a(f"v_mov_b32 v{vA_}, s{sSpin}")
        a("s_mov_b32 exec_lo, 1\ns_mov_b32 exec_hi, 0")
        for i in range(11): a(f"v_mov_b32 v{vD_+i}, s{streg(i)}")
        a(f"v_mov_b32 v{vD_+11}, s{sTl}")
        for i in range(3):
            a(f"buffer_store_dwordx4 v[{vD_+4*i}:{vD_+4*i+3}], v{vA_}, {srd(rWS)}, 0 offen offset:{16*i}")
    if cfg.stamps:
        a("L_fin_stamps0:")
        a("s_mov_b64 exec, -1")
        a("L_fin_stamps:")
        dump_stamps(vA, vF)
    a("s_endpgm")
    nv_stream = V.n

    H = Regs(8, 256)
    a("L_helper:")
    nstamp[0] = 1
    hx0 = H("x0", 4, 4); hx1 = H("x1", 4, 4); hgw = H("gw", 4, 4)
    hA = H("A"); hB = H("B"); hC = H("C"); hD = H("D"); hz0 = H("z0"); hz1 = H("z1")
    ht = [H(f"t{i}") for i in range(8)]
    hq = H("q", 16, 4)
    mksrd(rO, P_GW, None, 1024)
    a(f"""
    v_lshlrev_b32 v{hA}, 4, v{vLane}
    buffer_load_dwordx4 v[{hx0}:{hx0+3}], v{hA}, {srd(rX)}, 0 offen
    buffer_load_dwordx4 v[{hx1}:{hx1+3}], v{hA}, {srd(rX)}, 0 offen offset:1024
    buffer_load_dwordx4 v[{hgw}:{hgw+3}], v{hA}, {srd(rO)}, 0 offen
    v_mov_b32 v{ht[0]}, 0
    v_mov_b32 v{hB}, {L_ZERO}
    ds_write_b32 v{hB}, v{ht[0]}
    ds_write_b32 v{hB}, v{ht[0]} offset:4
    ds_write_b32 v{hB}, v{ht[0]} offset:8
    ds_write_b32 v{hB}, v{ht[0]} offset:12
    s_waitcnt lgkmcnt(0)
    s_add_u32 s{sEn}, s{sEp}, 1
    s_not_b32 s{sEnn}, s{sEn}
    s_and_b32 s{sT0}, s{sEn}, s{sMask}
    v_mov_b32 v{vTag}, s{sT0}
    v_mov_b32 v{hz0}, 0
    v_mov_b32 v{hz1}, 0
    s_waitcnt vmcnt(0)
    """)
    for k in range(4):
        for (xr, z) in ((hx0, hz0), (hx1, hz1)):
            a(f"""
            v_lshlrev_b32 v{ht[0]}, 16, v{xr+k}
            v_and_b32 v{ht[1]}, 0xffff0000, v{xr+k}
            v_lshlrev_b32 v{ht[2]}, 16, v{hgw+k}
            v_and_b32 v{ht[3]}, 0xffff0000, v{hgw+k}
            v_mul_f32 v{ht[0]}, v{ht[0]}, v{ht[2]}
            v_mul_f32 v{ht[1]}, v{ht[1]}, v{ht[3]}
            v_cvt_pk_bf16_f32 v{ht[0]}, v{ht[0]}, v{ht[1]}
            v_and_b32 v{ht[1]}, 0xffff0000, v{ht[0]}
            v_lshlrev_b32 v{ht[0]}, 16, v{ht[0]}
            v_add_f32 v{z}, v{z}, v{ht[0]}
            v_add_f32 v{z}, v{z}, v{ht[1]}
            """)
    for z in (hz0, hz1):
        for n in (1, 2, 4, 8):
            a(f"v_add_f32_dpp v{z}, v{z}, v{z} row_ror:{n} row_mask:0xf bank_mask:0xf")
    for sw in ("16", "32"):
        for z in (hz0, hz1):
            a(f"v_mov_b32 v{ht[0]}, v{z}\nv_permlane{sw}_swap_b32 v{z}, v{ht[0]}\nv_add_f32 v{z}, v{z}, v{ht[0]}")
    a(f"""
    v_cvt_pk_bf16_f32 v{ht[0]}, v{hz0}, v{hz1}
    v_lshlrev_b32 v{hz0}, 16, v{ht[0]}
    v_and_b32 v{hz1}, 0xffff0000, v{ht[0]}
    s_mov_b32 s{sT0}, {f2u(-LOG2E):#x}
    v_mul_f32 v{hz0}, s{sT0}, v{hz0}
    v_mul_f32 v{hz1}, s{sT0}, v{hz1}
    v_exp_f32 v{hz0}, v{hz0}
    v_exp_f32 v{hz1}, v{hz1}
    v_add_f32 v{hz0}, 1.0, v{hz0}
    v_add_f32 v{hz1}, 1.0, v{hz1}
    v_rcp_f32 v{hz0}, v{hz0}
    v_rcp_f32 v{hz1}, v{hz1}
    v_cvt_pk_bf16_f32 v{ht[0]}, v{hz0}, v{hz1}
    v_lshlrev_b32 v{hz0}, 16, v{ht[0]}       ; g0
    v_and_b32 v{hz1}, 0xffff0000, v{ht[0]}   ; g1
    v_mov_b32 v{hB}, {L_G}
    ds_write_b32 v{hB}, v{hz0}
    ds_write_b32 v{hB}, v{hz1} offset:4
    v_sub_f32 v{hz0}, 1.0, v{hz0}
    v_sub_f32 v{hz1}, 1.0, v{hz1}
    v_cvt_pk_bf16_f32 v{ht[0]}, v{hz0}, v{hz1}
    v_lshlrev_b32 v{hz0}, 16, v{ht[0]}       ; 1-g0
    v_and_b32 v{hz1}, 0xffff0000, v{ht[0]}   ; 1-g1
    s_lshl_b32 s{sT0}, s{sKh}, 15
    s_add_u32 s{sT0}, s{sT0}, {WS_QP}
    s_lshl_b32 s{sT1}, s{sMat}, 1
    s_add_u32 s{sT1}, s{sT1}, s{sKh}
    s_mul_i32 s{sT1}, s{sT1}, 14336
    s_add_u32 s{sT1}, s{sT1}, {WS_FP}
    s_mov_b32 s{sT3}, 7168
    s_cmp_lt_u32 s2, 128
    s_cselect_b32 s{sT0}, s{sT0}, s{sT1}
    s_cselect_b32 s{sT1}, 16384, s{sT3}
    s_lshl_b32 s{sT2}, s{sCg}, 8
    s_add_u32 s{sT0}, s{sT0}, s{sT2}
    v_and_b32 v{ht[0]}, 1, v{vG}
    v_mul_lo_u32 v{hA}, v{ht[0]}, s{sT1}
    v_lshl_add_u32 v{hA}, v{vN}, 4, v{hA}
    v_add_u32 v{hA}, s{sT0}, v{hA}
    v_lshlrev_b32 v{hB}, 8, v{ht[0]}
    v_lshl_add_u32 v{hB}, v{vN}, 4, v{hB}
    v_add_u32 v{hB}, {L_P0}, v{hB}
    s_lshr_b32 s{sT0}, s{sIdx}, 4
    s_lshl_b32 s{sT0}, s{sT0}, 14
    s_lshl_b32 s{sT1}, s{sHkv}, 11
    s_add_u32 s{sT0}, s{sT0}, s{sT1}
    s_add_u32 s{sT0}, s{sT0}, {WS_QP}
    v_lshlrev_b32 v{ht[1]}, 4, v{vLane}
    v_add_u32 v{hC}, s{sT0}, v{ht[1]}
    s_waitcnt lgkmcnt(0)
    """)
    if cfg.stamps:
        for i in range(1, 11): a(f"s_mov_b32 s{streg(i)}, 0")
    a("s_barrier   ; B0")
    stamp("hB0")
    a("s_cmp_ge_u32 s2, 240")
    a("s_cbranch_scc1 L_h_nopub")
    for wv in range(4):
        a(f"ds_read_b128 v[{hq+4*wv}:{hq+4*wv+3}], v{hB} offset:{512*wv}")
    a("s_waitcnt lgkmcnt(0)")
    for k in range(4):
        a(f"v_add_f32 v{hq+k}, v{hq+k}, v{hq+4+k}")
        a(f"v_add_f32 v{hq+8+k}, v{hq+8+k}, v{hq+12+k}")
    for k in range(4): a(f"v_add_f32 v{hq+k}, v{hq+k}, v{hq+8+k}")
    for k in range(4): a(f"v_bfi_b32 v{hq+k}, s{sMask}, v{vTag}, v{hq+k}")
    a(f"""
    s_mov_b32 exec_hi, 0
    buffer_store_dwordx4 v[{hq}:{hq+3}], v{hA}, {srd(rWS)}, 0 offen sc1
    s_mov_b64 exec, -1
    """)
    a("L_h_nopub:")
    stamp("hpub")
    a(f"s_mov_b32 s{sSpin}, {cfg.spin}")
    a(f"s_mov_b32 s{sT3}, 32768")
    a(f"v_not_b32 v{hD}, s{sMask}")
    a("L_hq:")
    a(f"""
    buffer_load_dwordx4 v[{hq}:{hq+3}], v{hC}, {srd(rWS)}, 0 offen sc1
    buffer_load_dwordx4 v[{hq+4}:{hq+7}], v{hC}, {srd(rWS)}, 0 offen offset:1024 sc1
    buffer_load_dwordx4 v[{hq+8}:{hq+11}], v{hC}, {srd(rWS)}, s{sT3} offen sc1
    buffer_load_dwordx4 v[{hq+12}:{hq+15}], v{hC}, {srd(rWS)}, s{sT3} offen offset:1024 sc1
    s_waitcnt vmcnt(0)
    """)
    for i in range(8):
        a(f"v_bitop3_b32 v{ht[i]}, v{hq+2*i}, v{hq+2*i+1}, v{vTag} bitop3:0x7e")
    a(f"""
    v_or3_b32 v{ht[0]}, v{ht[0]}, v{ht[1]}, v{ht[2]}
    v_or3_b32 v{ht[3]}, v{ht[3]}, v{ht[4]}, v{ht[5]}
    v_or3_b32 v{ht[0]}, v{ht[0]}, v{ht[6]}, v{ht[7]}
    v_or_b32 v{ht[0]}, v{ht[0]}, v{ht[3]}
    v_and_b32 v{ht[0]}, s{sMask}, v{ht[0]}
    v_cmp_ne_u32 vcc, 0, v{ht[0]}
    s_cbranch_vccz L_hq_done
    """)
    if cfg.sleep: a(f"s_sleep {cfg.sleep}")
    a(f"""
    s_sub_u32 s{sSpin}, s{sSpin}, 1
    s_cmp_lg_u32 s{sSpin}, 0
    s_cbranch_scc1 L_hq
    """)
    a("L_hq_done:")
    stamp("hq")
    for i in range(16): a(f"v_and_b32 v{hq+i}, v{hq+i}, v{hD}")
    for i in range(8): a(f"v_add_f32 v{hq+i}, v{hq+i}, v{hq+8+i}")
    for i in range(4): a(f"v_cvt_pk_bf16_f32 v{hq+i}, v{hq+2*i}, v{hq+2*i+1}")
    a(f"""
    v_lshlrev_b32 v{hA}, 3, v{vLane}
    v_add_u32 v{hA}, {L_Q}, v{hA}
    ds_write_b64 v{hA}, v[{hq}:{hq+1}]
    ds_write_b64 v{hA}, v[{hq+2}:{hq+3}] offset:512
    v_and_b32 v{ht[0]}, 3, v{vLane}
    v_bfe_u32 v{ht[1]}, v{vLane}, 2, 1
    v_bfe_u32 v{ht[2]}, v{vLane}, 3, 1
    v_lshlrev_b32 v{hC}, 4, v{ht[0]}
    v_mul_u32_u24 v{ht[3]}, 7168, v{ht[1]}
    v_mul_u32_u24 v{ht[4]}, 14336, v{ht[2]}
    v_add3_u32 v{hC}, v{hC}, v{ht[3]}, v{ht[4]}
    s_lshl_b32 s{sT0}, s{sW0}, 2
    s_add_u32 s{sT0}, s{sT0}, {WS_FP}
    v_add_u32 v{hC}, s{sT0}, v{hC}
    s_mov_b32 s{sT3}, 28672
    s_waitcnt lgkmcnt(0)
    s_barrier   ; B1
    s_mov_b32 s{sSpin}, {cfg.spin}
    """)
    a("L_hf:")
    a(f"""
    buffer_load_dwordx4 v[{hq}:{hq+3}], v{hC}, {srd(rWS)}, 0 offen sc1
    buffer_load_dwordx4 v[{hq+4}:{hq+7}], v{hC}, {srd(rWS)}, s{sT3} offen sc1
    s_waitcnt vmcnt(0)
    """)
    for i in range(4):
        a(f"v_bitop3_b32 v{ht[3+i]}, v{hq+2*i}, v{hq+2*i+1}, v{vTag} bitop3:0x7e")
    a(f"""
    v_or3_b32 v{ht[3]}, v{ht[3]}, v{ht[4]}, v{ht[5]}
    v_or_b32 v{ht[3]}, v{ht[3]}, v{ht[6]}
    v_and_b32 v{ht[3]}, s{sMask}, v{ht[3]}
    v_cmp_ne_u32 vcc, 0, v{ht[3]}
    s_cbranch_vccz L_hf_done
    """)
    if cfg.sleep: a(f"s_sleep {cfg.sleep}")
    a(f"""
    s_sub_u32 s{sSpin}, s{sSpin}, 1
    s_cmp_lg_u32 s{sSpin}, 0
    s_cbranch_scc1 L_hf
    """)
    a("L_hf_done:")
    stamp("hf")
    for i in range(8): a(f"v_and_b32 v{hq+i}, v{hq+i}, v{hD}")
    for i in range(8): a(f"v_add_f32_dpp v{hq+i}, v{hq+i}, v{hq+i} row_ror:8 row_mask:0xf bank_mask:0xf")
    a(f"v_cmp_eq_u32 vcc, 1, v{ht[1]}")
    a(f"v_cndmask_b32 v{hz0}, v{hz0}, v{hz1}, vcc")
    a(f"s_mov_b32 s{sT0}, {f2u(-LOG2E):#x}")
    for k in range(4):
        g = hq + k; u = hq + 4 + k; e = hq + 8 + k
        a(f"v_mul_f32 v{e}, s{sT0}, v{g}")
    for k in range(4): a(f"v_exp_f32 v{hq+8+k}, v{hq+8+k}")
    for k in range(4): a(f"v_add_f32 v{hq+8+k}, 1.0, v{hq+8+k}")
    for k in range(4): a(f"v_rcp_f32 v{hq+8+k}, v{hq+8+k}")
    for k in range(4): a(f"v_mul_f32 v{hq+k}, v{hq+k}, v{hq+8+k}")
    for k in range(4): a(f"v_mul_f32 v{hq+k}, v{hq+k}, v{hq+4+k}")
    for k in range(4): a(f"v_mul_f32 v{hq+k}, v{hq+k}, v{hz0}")
    a(f"""
    s_and_b32 s{sT0}, s{sR}, 1
    s_cmp_eq_u32 s{sT0}, 0
    s_cselect_b32 s{sT1}, 3, 4
    s_cselect_b32 s{sT2}, 4, 0
    v_cmp_eq_u32 vcc, s{sT1}, v{ht[0]}
    v_cndmask_b32 v{hq+2}, v{hq+2}, 0, vcc
    v_cndmask_b32 v{hq+3}, v{hq+3}, 0, vcc
    v_cmp_eq_u32 vcc, s{sT2}, v{ht[0]}
    v_cndmask_b32 v{hq}, v{hq}, 0, vcc
    v_cndmask_b32 v{hq+1}, v{hq+1}, 0, vcc
    v_cvt_pk_bf16_f32 v{hq}, v{hq}, v{hq+1}
    v_cvt_pk_bf16_f32 v{hq+1}, v{hq+2}, v{hq+3}
    v_lshlrev_b32 v{hA}, 5, v{ht[1]}
    v_lshl_add_u32 v{hA}, v{ht[0]}, 3, v{hA}
    v_add_u32 v{hA}, {L_H}, v{hA}
    ds_write_b64 v{hA}, v[{hq}:{hq+1}]
    s_waitcnt lgkmcnt(0)
    s_barrier   ; B2
    """)
    if cfg.stamps:
        dump_stamps(hA, hq, True)
    a("L_end:")
    a("s_endpgm")
    nv = max(nv_stream, H.n)
    a.names = names
    return a, nv, nsgpr

HEADER = """; Fused decode step: out = g*Attn(x) + (1-g)*FFN(x), one launch, 256 workgroups (one per CU), 5 waves each.
; @launch grid=(256,1,1) block=(320,1,1) lds=163840
.amdgcn_target "amdgcn-amd-amdhsa--gfx950"
.text
"""
def full(cfg):
    a, nv, ns = gen(cfg)
    nvr = (nv + 7) // 8 * 8
    kd = f"""
.section .rodata,"a"
.p2align 6
.amdhsa_kernel {KNAME}
  .amdhsa_next_free_vgpr {nvr}
  .amdhsa_next_free_sgpr {max(ns, 96)}
  .amdhsa_accum_offset {nvr}
  .amdhsa_group_segment_fixed_size 0
  .amdhsa_kernarg_size 104
  .amdhsa_user_sgpr_count 2
  .amdhsa_user_sgpr_kernarg_segment_ptr 1
  .amdhsa_system_sgpr_workgroup_id_x 1
  .amdhsa_float_denorm_mode_32 3
.end_amdhsa_kernel
"""
    return HEADER + a.text() + kd, nv, ns, a.nnops

if __name__ == "__main__":
    import argparse
    ap = argparse.ArgumentParser()
    ap.add_argument("-o", default="k.s")
    ap.add_argument("opts", nargs="*")
    args = ap.parse_args()
    kw = {}
    for o in args.opts:
        k, v = o.split("=")
        kw[k] = (v if k in ("kvpol", "wpol", "p2pos") else int(v))
    if kw.get("kvpol") == "def": kw["kvpol"] = ""
    if kw.get("wpol") == "def": kw["wpol"] = ""
    cfg = Cfg(**kw)
    txt, nv, ns, nn = full(cfg)
    open(args.o, "w").write(txt)
    print(f"wrote {args.o}: vgprs {nv} sgprs {ns} nops {nn} lines {txt.count(chr(10))}")
```
